```python
import torch

def _softmax(x, axis=-1):
    return torch.softmax(x, dim=axis)
def _gelu(x):
    return torch.nn.functional.gelu(x, approximate="tanh")
def _silu(x):
    return torch.nn.functional.silu(x)
def _sigmoid(x):
    return torch.sigmoid(x)
def _layernorm(x, axis=-1, eps=1e-5):
    m = x.mean(dim=axis, keepdim=True)
    v = x.var(dim=axis, keepdim=True, unbiased=False)
    return (x - m) / torch.sqrt(v + eps)
def _scatter_add(tgt, idx, src, axis=0):
    return tgt.clone().index_add_(axis, idx, src)
def _segment_sum(src, seg, n):
    out = torch.zeros((n,) + src.shape[1:], dtype=src.dtype)
    return out.index_add_(0, seg, src)
def _pad(x, pw):
    flat = tuple(v for pair in reversed(pw) for v in pair)
    return torch.nn.functional.pad(x, flat)

kernel_name = 'sequential_preLN__ssm_conv_s4__glu_gated_reglu__prompt'

def setup_inputs():

    _w = (lambda a: (lambda t: t.to(torch.bfloat16) if t.is_floating_point() else t)(torch.as_tensor(a)))
    def _A_setup():
        B, L, D, N = 1, 2048, 448, 256
        A_re = -(lambda _x: torch.exp(torch.as_tensor(_x)))((lambda *s: torch.randn(*s, dtype=torch.bfloat16) * 3.2)(D, N))
        A_im = torch.pi * (lambda *s: torch.randn(*s, dtype=torch.bfloat16) * 0.05)(D, N)
        B_re = (lambda *s: torch.randn(*s, dtype=torch.bfloat16) * 0.05)(D, N)
        B_im = (lambda *s: torch.randn(*s, dtype=torch.bfloat16) * 0.05)(D, N)
        C_re = (lambda *s: torch.randn(*s, dtype=torch.bfloat16) * 0.05)(D, N)
        C_im = (lambda *s: torch.randn(*s, dtype=torch.bfloat16) * 0.05)(D, N)
        log_dt = (lambda *s: torch.randn(*s, dtype=torch.bfloat16) * 0.05)(D) * 0.5 - 4.0
        Dskip = (lambda *s: torch.randn(*s, dtype=torch.bfloat16) * 0.05)(D)
        return {
            "u": _w((lambda *s: torch.randn(*s, dtype=torch.bfloat16) * 0.05)(B, L, D)),
            "A_re": _w(A_re),
            "A_im": _w(A_im),
            "B_re": _w(B_re),
            "B_im": _w(B_im),
            "C_re": _w(C_re),
            "C_im": _w(C_im),
            "log_dt": _w(log_dt),
            "Dskip": _w(Dskip),
        }
    _A_in = _A_setup()

    def _B_setup():
        B, S, D, F = 1, 2048, 448, 1792
        return {
            "x": _w((lambda *s: torch.randn(*s, dtype=torch.bfloat16) * 0.05)(B, S, D)),
            "W_gate": _w((lambda *s: torch.randn(*s, dtype=torch.bfloat16) * 0.4)(D, F) * (2.0 / D) ** 0.5),
            "W_up": _w((lambda *s: torch.randn(*s, dtype=torch.bfloat16) * 0.4)(D, F) * (2.0 / D) ** 0.5),
            "W_down": _w((lambda *s: torch.randn(*s, dtype=torch.bfloat16) * 0.4)(F, D) * (1.0 / F) ** 0.5),
        }
    _B_in = _B_setup()

    return {
        "A_u": _A_in["u"],
        "A_A_re": _A_in["A_re"],
        "A_A_im": _A_in["A_im"],
        "A_B_re": _A_in["B_re"],
        "A_B_im": _A_in["B_im"],
        "A_C_re": _A_in["C_re"],
        "A_C_im": _A_in["C_im"],
        "A_log_dt": _A_in["log_dt"],
        "A_Dskip": _A_in["Dskip"],
        "B_x": _B_in["x"],
        "B_W_gate": _B_in["W_gate"],
        "B_W_up": _B_in["W_up"],
        "B_W_down": _B_in["W_down"],
    }

def reference(A_u, A_A_re, A_A_im, A_B_re, A_B_im, A_C_re, A_C_im, A_log_dt, A_Dskip, B_x, B_W_gate, B_W_up, B_W_down):
    def _A_ref(u, A_re, A_im, B_re, B_im, C_re, C_im, log_dt, Dskip):
        Bsz, L, D = u.shape
        dt = torch.exp(log_dt)[:, None]
        A = A_re + 1j * A_im
        Bc = B_re + 1j * B_im
        Cc = C_re + 1j * C_im
        logdA = dt * A
        dB = dt * Bc
        l = (lambda x, dt: x.to(dt))(torch.arange(L), A_re.dtype)
        P = torch.exp(logdA[:, :, None] * l[None, None, :])
        K = torch.einsum("dn,dnl,dn->dl", Cc, P, dB).real
        L2 = 2 * L
        Kp = _pad(K, ((0, 0), (0, L)))
        up = (lambda x, *d: x.permute(*d))(u, 0, 2, 1)
        up = _pad(up, ((0, 0), (0, 0), (0, L)))
        Kf = (lambda x, axes=(-2,-1): torch.fft.rfft2(x.float(), dim=axes))(Kp[:, None, :], axes=(-2, -1))
        Uf = (lambda x, axes=(-2,-1): torch.fft.rfft2(x.float(), dim=axes))(up[:, :, None, :], axes=(-2, -1))
        Yf = Uf * Kf[None, :, :, :]
        y = (lambda x, s, axes=(-2,-1): torch.fft.irfft2(x, s=s, dim=axes).to(torch.bfloat16))(Yf, (1, L2), axes=(-2, -1))[:, :, 0, :L]
        y = (lambda x, *d: x.permute(*d))(y, 0, 2, 1) + u * Dskip[None, None, :]
        return y

    def _B_ref(x, W_gate, W_up, W_down):
        gate = torch.einsum("bsd,df->bsf", x, W_gate)
        up = torch.einsum("bsd,df->bsf", x, W_up)
        gate = gate * (lambda x, dt: x.to(dt))(gate > 0, gate.dtype)
        h = gate * up
        return torch.einsum("bsf,fd->bsd", h, W_down)

    x = A_u
    h = x + _A_ref(_layernorm(x, axis=-1), A_A_re, A_A_im, A_B_re, A_B_im, A_C_re, A_C_im, A_log_dt, A_Dskip)
    h2 = h + _B_ref(_layernorm(h, axis=-1), B_W_gate, B_W_up, B_W_down)
    return h2
```

```python
import re

TRANS = ("v_exp_f32", "v_log_f32", "v_rcp_f32", "v_rsq_f32", "v_sqrt_f32", "v_sin_f32", "v_cos_f32", "v_rcp_iflag_f32")
_REG = re.compile(r"^(-|abs\()?([vas])(\d+|\[(\d+):(\d+)\])\)?$")

def regs_of(tok):
    tok = tok.strip()
    if tok in ("vcc", "exec", "m0", "scc"): return {tok}
    if tok in ("vcc_lo", "vcc_hi"): return {"vcc"}
    if tok in ("exec_lo", "exec_hi"): return {"exec"}
    t = tok.lstrip("-")
    if t.startswith("abs(") and t.endswith(")"): t = t[4:-1]
    if t.startswith("|") and t.endswith("|"): t = t[1:-1]
    m = re.match(r"^([vas])(\d+)$", t)
    if m: return {m.group(1) + m.group(2)}
    m = re.match(r"^([vas])\[(\d+):(\d+)\]$", t)
    if m: return {m.group(1) + str(i) for i in range(int(m.group(2)), int(m.group(3)) + 1)}
    return set()

class Ins:
    __slots__ = ("text", "op", "ops", "mods", "cls", "w", "r", "passes", "srcC", "srcAB", "states", "dpp", "data")
    def __init__(self, text):
        self.text = text
        body = text.split(";")[0].strip()
        parts = body.split(None, 1)
        self.op = parts[0]
        rest = parts[1] if len(parts) > 1 else ""
        ops, depth, cur = [], 0, ""
        for ch in rest:
            if ch in "[(": depth += 1
            if ch in "])": depth -= 1
            if ch == "," and depth == 0: ops.append(cur.strip()); cur = ""
            else: cur += ch
        if cur.strip(): ops.append(cur.strip())
        mods = ""
        if ops:
            last = ops[-1].split(None, 1)
            if len(last) > 1: ops[-1] = last[0]; mods = last[1]
        self.ops, self.mods = ops, mods
        self.w, self.r = set(), set()
        self.passes = 0; self.srcC = set(); self.srcAB = set(); self.states = 1; self.data = set()
        op = self.op
        self.dpp = "_dpp" in op or "quad_perm" in mods or "row_" in mods
        R = [regs_of(o) for o in ops]
        if op.startswith("v_mfma"):
            self.cls = "mfma"
            self.passes = 8 if "32x32" in op else 4
            self.w = R[0]; self.srcAB = R[1] | R[2]; self.srcC = R[3]; self.r = self.srcAB | self.srcC
        elif op.startswith("v_"):
            self.cls = "valu"
            if op.startswith("v_cmp"):
                self.w = R[0]; self.r = set().union(*R[1:])
            elif op.startswith("v_permlane") and "swap" in op:
                self.w = R[0] | R[1]; self.r = R[0] | R[1]
            elif "_co_" in op or op.startswith("v_mad_u64") or op.startswith("v_div_scale"):
                self.w = R[0] | R[1]; self.r = set().union(*R[2:])
            elif op == "v_nop":
                pass
            else:
                self.w = R[0]; self.r = set().union(*R[1:]) if len(R) > 1 else set()
                if op.startswith(("v_fmac", "v_dot2c", "v_pk_fmac", "v_writelane")) or self.dpp: self.r |= R[0]
                if op.startswith("v_cndmask") and len(R) == 3: self.r |= {"vcc"}
        elif op.startswith("ds_"):
            self.cls = "ds"
            if op.startswith(("ds_read", "ds_bpermute", "ds_permute", "ds_swizzle")) or "_rtn" in op:
                self.w = R[0]; self.r = set().union(*R[1:]) if len(R) > 1 else set()
            else:
                self.r = set().union(*R)
            if "addtid" in op: self.r |= {"m0"}
        elif op.startswith(("buffer_", "global_", "flat_")):
            self.cls = "vmem"
            lds = " lds" in (" " + mods) or "_lds_" in op
            if op in ("buffer_wbl2", "buffer_inv"): pass
            elif lds:
                self.r = set().union(*R) | {"m0"}
            elif "_load" in op:
                self.w = R[0]; self.r = set().union(*R[1:])
                if "d16" in op: self.r |= R[0]
            elif "atomic" in op:
                self.r = set().union(*R)
                if "sc0" in mods: self.w = R[0]
            else:
                self.r = set().union(*R)
                if "x3" in op or "x4" in op:
                    self.data = R[0] if op.startswith("buffer_") else R[1]
        elif op.startswith("s_"):
            self.cls = "salu"
            if op == "s_nop": self.states = int(ops[0], 0) + 1
            if op.startswith(("s_cmp", "s_cbranch", "s_branch", "s_waitcnt", "s_barrier", "s_nop", "s_endpgm", "s_sleep", "s_setprio", "s_bitcmp")):
                self.r = set().union(*R) if R else set()
            else:
                self.w = R[0] if R else set(); self.r = set().union(*R[1:]) if len(R) > 1 else set()
                if "saveexec" in op: self.w |= {"exec"}
        else:
            raise ValueError("unknown instruction: " + text)

def need(p, c):
    n = 0
    pv = {x for x in p.w if x[0] in "va" and x not in ("vcc",)}
    ps = p.w - pv
    if p.cls == "valu":
        if c.cls == "mfma" and pv & c.r: n = max(n, 2)
        if p.op.replace("_e32", "").replace("_e64", "") in TRANS and pv & (c.r | c.w) and not (c.cls == "valu" and c.op in TRANS and False): n = max(n, 1)
        if c.cls == "valu" and c.dpp and pv & c.r: n = max(n, 2)
        if c.op.startswith(("v_readlane", "v_readfirstlane")) and pv & c.r: n = max(n, 1)
        if c.op.startswith("v_permlane") and pv & c.r: n = max(n, 2)
        if ps:
            if c.cls in ("valu", "mfma") and ps & c.r: n = max(n, 4 if c.op.startswith(("v_readlane", "v_writelane")) else 2)
            if c.cls == "vmem" and ps & c.r: n = max(n, 5)
            if c.cls == "salu" and ps & c.r and c.op.startswith("s_load"): n = max(n, 5)
    if p.cls == "mfma":
        P = p.passes
        if c.cls == "mfma":
            if p.w & c.srcAB: n = max(n, P + 4)
            if p.w & c.srcC:
                if not (p.w == c.srcC and p.passes == c.passes): n = max(n, P + 2)
            elif p.w & c.w: n = max(n, P + 2)
        elif c.cls in ("valu", "ds", "vmem"):
            if p.w & (c.r | c.w): n = max(n, P + 4)
        if c.cls == "valu" and p.srcC & c.w: n = max(n, P - 1)
    if p.cls == "salu" and "m0" in p.w and "m0" in c.r and c.cls in ("ds", "vmem"): n = max(n, 1)
    if p.cls == "vmem" and p.data and (p.data & c.w): n = max(n, 2 if c.cls in ("valu", "mfma") else 1)
    return n

E32 = ("v_mov_b32", "v_add_u32", "v_sub_u32", "v_subrev_u32", "v_and_b32", "v_or_b32", "v_xor_b32", "v_lshlrev_b32", "v_lshrrev_b32",
       "v_ashrrev_i32", "v_mul_f32", "v_add_f32", "v_sub_f32", "v_subrev_f32", "v_max_f32", "v_min_f32", "v_min_u32", "v_max_u32", "v_mul_u32_u24",
       "v_exp_f32", "v_sin_f32", "v_cos_f32", "v_rcp_f32", "v_sqrt_f32", "v_rsq_f32", "v_fract_f32", "v_fmac_f32", "v_cndmask_b32",
       "v_cvt_f32_u32", "v_cvt_u32_f32", "v_not_b32", "v_log_f32")
VOP1 = ("v_mov_b32", "v_exp_f32", "v_sin_f32", "v_cos_f32", "v_rcp_f32", "v_sqrt_f32", "v_rsq_f32", "v_fract_f32", "v_cvt_f32_u32", "v_cvt_u32_f32", "v_not_b32", "v_log_f32")
def is_lit(tok):
    tok = tok.strip()
    if regs_of(tok) or tok in ("off",): return False
    try:
        v = int(tok, 0)
        return not (-16 <= v <= 64)
    except ValueError:
        pass
    try:
        f = float(tok)
        return f not in (0.5, -0.5, 1.0, -1.0, 2.0, -2.0, 4.0, -4.0, 0.0) and abs(f - 0.15915494) > 1e-6
    except ValueError:
        return True
def size_of(i):
    op = i.op
    if i.cls in ("mfma", "ds", "vmem"): return 8, False
    if i.cls == "salu":
        if op.startswith(("s_load", "s_memtime", "s_memrealtime", "s_buffer_load", "s_atomic", "s_dcache")): return 8, False
        if op.startswith(("s_cbranch", "s_branch", "s_waitcnt", "s_barrier", "s_nop", "s_endpgm", "s_sleep", "s_setprio", "s_movk", "s_addk", "s_mulk", "s_getreg", "s_getpc")): return 4, False
        return (8 if any(is_lit(o) for o in i.ops[1:] if True) or (op.startswith("s_cmp") and is_lit(i.ops[0])) else 4), False
    if i.dpp or op.endswith("_e64"): return 8, False
    if op.startswith(("v_readfirstlane", "v_permlane")) or op == "v_nop": return 4, False
    mod = bool(i.mods) or any(o.startswith(("-v", "-s", "abs", "|")) for o in i.ops)
    if op.startswith("v_cmp"):
        e32 = i.ops[0] == "vcc" and i.ops[2].startswith("v") and not mod
    elif op in E32:
        if op in VOP1: e32 = not mod
        elif op == "v_cndmask_b32": e32 = i.ops[2].startswith("v") and (len(i.ops) == 3 or i.ops[3] == "vcc") and not mod
        else: e32 = i.ops[2].startswith("v") and i.ops[2] != "vcc" and not mod
    else:
        return 8, False
    if not e32: return 8, False
    if any(is_lit(o) for o in i.ops[1:]): return 8, False
    return 4, True

class Prog:
    def __init__(self):
        self.items = []
    def __call__(self, text):
        for line in text.strip("\n").split("\n"):
            l = line.strip()
            if not l or l.startswith(";"):
                if l: self.items.append("    " + l)
                continue
            if l.endswith(":") or l.startswith("."):
                self.items.append(l); continue
            self.items.append(Ins(l))
    def raw(self, text): self.items.append(text)
    def render(self, align=True):
        seq = []; hist = []
        for it in self.items:
            if isinstance(it, str):
                seq.append(it); continue
            pad = 0; dist = 0
            for p in reversed(hist):
                n = need(p, it)
                if n > dist: pad = max(pad, n - dist)
                dist += p.states
                if dist > 24: break
            while pad > 0:
                k = min(pad, 16)
                nop = Ins(f"s_nop {k-1} ; auto")
                seq.append(nop); hist.append(nop); pad -= k
            seq.append(it); hist.append(it)
            if len(hist) > 40: hist = hist[-40:]
        out = []; off = 0; lastp = None
        ins_idx = [k for k, x in enumerate(seq) if not isinstance(x, str)]
        sizes = {k: size_of(seq[k]) for k in ins_idx}
        for k, it in enumerate(seq):
            if isinstance(it, str):
                if ".p2align" in it: off = 0; lastp = None
                out.append(it); continue
            sz, prom = sizes[k]
            if align and sz == 8 and off % 8 == 4:
                if lastp is not None:
                    t = out[lastp].strip().split(None, 1)
                    out[lastp] = "    " + t[0] + "_e64 " + t[1]
                    off += 4
                else:
                    run = 0; j = k
                    while j < len(seq) and (isinstance(seq[j], str) or sizes[j][0] == 8):
                        if not isinstance(seq[j], str): run += 1
                        j += 1
                    if run >= 6:
                        out.append("    s_nop 0 ; align"); off += 4
            out.append("    " + it.text)
            if sz == 8: lastp = None
            elif prom: lastp = len(out) - 1
            off += sz
        return "\n".join(out) + "\n"

def kd(name, vgpr, sgpr, accum=None):
    accum = accum if accum is not None else (vgpr + 3) // 4 * 4
    return f""".p2align 6
.amdhsa_kernel {name}
  .amdhsa_next_free_vgpr {vgpr}
  .amdhsa_next_free_sgpr {sgpr}
  .amdhsa_accum_offset {accum}
  .amdhsa_group_segment_fixed_size 0
  .amdhsa_kernarg_size 128
  .amdhsa_user_sgpr_count 2
  .amdhsa_user_sgpr_kernarg_segment_ptr 1
  .amdhsa_system_sgpr_workgroup_id_x 1
.end_amdhsa_kernel
"""
def vr(b, n=1): return f"v{b}" if n == 1 else f"v[{b}:{b+n-1}]"
def sr(b, n=1): return f"s{b}" if n == 1 else f"s[{b}:{b+n-1}]"
```

```python
import sys
from asmgen import *
import gen as G
from gen import *

WS_RS2 = WS_ST2

NST = 6
UPOFF = 3584 + 128
STG = 16384 + UPOFF + 3584
L2_WD = NST * STG
L2_CS = L2_WD + 7168
L2_END = L2_CS + 512
assert L2_END <= 163840

def gen_k2(p):
    name = "k2_kernel"
    prologue(p, name, 256)
    ts(p, 0, 1)
    S_W, S_FS, S_RB, S_T0, S_T1, S_T2, S_LV = 48, 49, 50, 51, 52, 53, 54
    p("v_lshrrev_b32 v1, 6, v0")
    p("v_and_b32 v2, 63, v0")
    p(f"v_readfirstlane_b32 s{S_W}, v1")
    p(f"s_and_b32 s{S_T0}, s2, 7")
    p(f"s_lshr_b32 s{S_T1}, s2, 3")
    p(f"s_and_b32 s{S_FS}, s{S_T1}, 3")
    p(f"s_lshl_b32 s{S_T0}, s{S_T0}, 2")
    p(f"s_add_u32 s{S_FS}, s{S_FS}, s{S_T0}")
    p(f"s_lshr_b32 s{S_RB}, s{S_T1}, 2")
    p(f"s_cmp_ge_u32 s{S_W}, 4")
    p("s_cbranch_scc1 L_k2_load")
    FR = [8, 52]
    AH = 96
    AW = 108
    ONES = 112
    SUM = 116
    ACC = 132
    p("v_lshrrev_b32 v3, 4, v2")
    p("v_bfe_u32 v4, v2, 2, 2")
    p("v_and_b32 v5, 3, v2")
    p("v_lshl_add_u32 v6, v3, 2, v4")
    p("v_and_b32 v7, 7, v6")
    for t in range(4):
        p(f"s_lshl_b32 s{S_T0}, s{S_W}, 2")
        p(f"s_add_u32 s{S_T0}, s{S_T0}, {t}")
        p(f"v_xor_b32 v244, s{S_T0}, v7")
        p("v_lshlrev_b32 v244, 5, v244")
        p("v_lshl_add_u32 v244, v6, 9, v244")
        p(f"v_lshl_add_u32 v{AH+t}, v5, 3, v244")
        for b in (1, 2): p(f"v_add_u32 v{AH+4*b+t}, {2*STG*b}, v{AH+t}")
    p("v_mul_u32_u24 v244, 112, v6")
    p("v_lshrrev_b32 v245, 1, v5")
    p(f"v_mul_u32_u24 v245, {UPOFF}, v245")
    p("v_and_b32 v246, 1, v5")
    p("v_lshlrev_b32 v246, 3, v246")
    p("v_add3_u32 v244, v244, v245, v246")
    p(f"v_add_u32 v{AW}, 16384, v244")
    for b in (1, 2): p(f"v_add_u32 v{AW+b}, {2*STG*b}, v{AW}")
    for i in range(4): p(f"v_mov_b32 v{ONES+i}, 0x3f803f80")
    def reads(s):
        st = s % NST; b = st // 2; o = (st % 2) * STG
        fr = FR[s & 1]
        out = []
        for t in range(4):
            r = fr + 28 + 4 * t
            out.append(f"ds_read_b64_tr_b16 v[{r}:{r+1}], v{AH+4*b+t} offset:{o}")
            out.append(f"ds_read_b64_tr_b16 v[{r+2}:{r+3}], v{AH+4*b+t} offset:{o+8192}")
        for j in range(7):
            r = fr + 4 * j
            out.append(f"ds_read_b64_tr_b16 v[{r}:{r+1}], v{AW+b} offset:{o+16*j}")
            out.append(f"ds_read_b64_tr_b16 v[{r+2}:{r+3}], v{AW+b} offset:{o+16*j+1792}")
        return out
    p("s_barrier")
    ts(p, 1, 1)
    for x in reads(0): p(x)
    p("s_waitcnt lgkmcnt(0)")
    for s in range(14):
        pend = []
        if s < 13:
            p("s_barrier")
            pend = reads(s + 1)
        fr = FR[s & 1]
        mf = []
        for t in range(4):
            d = SUM + 4 * t
            mf.append(f"v_mfma_f32_16x16x32_bf16 {vr(d,4)}, {vr(ONES,4)}, {vr(fr+28+4*t,4)}, {'0' if s == 0 else vr(d,4)}")
        for j in range(7):
            for t in range(4):
                d = ACC + (j * 4 + t) * 4
                mf.append(f"v_mfma_f32_16x16x32_bf16 {vr(d,4)}, {vr(fr+4*j,4)}, {vr(fr+28+4*t,4)}, {'0' if s == 0 else vr(d,4)}")
        for x in mf:
            p(x)
            if pend: p(pend.pop(0))
        if s < 13: p("s_waitcnt lgkmcnt(0)")
    ts(p, 2, 1)
    p("s_barrier")
    p("v_and_b32 v244, 1, v3")
    p("v_lshlrev_b32 v244, 4, v244")
    p(f"v_add_u32 v244, {L2_CS}, v244")
    CS = 8
    for j in range(7):
        p(f"ds_read_b128 v[{CS+8*j}:{CS+8*j+3}], v244 offset:{32*j}")
        p(f"ds_read_b128 v[{CS+8*j+4}:{CS+8*j+7}], v244 offset:{224+32*j}")
    p("v_cmp_gt_u32 vcc, 32, v2")
    M = 64
    for P in range(2):
        p(f"v_cndmask_b32 v245, v{SUM+4*(2*P+1)}, v{SUM+4*(2*P)}, vcc")
        p(f"v_mul_f32 v245, {hx(f32(1.0/448))}, v245")
        p("v_cvt_pk_bf16_f32 v245, v245, v245")
        p("v_lshlrev_b32 v245, 16, v245")
        p(f"v_xor_b32 v{M+2*P}, 0x80000000, v245")
        p(f"v_mov_b32 v{M+2*P+1}, v{M+2*P}")
    p(f"s_lshl_b32 s{S_T0}, s{S_RB}, 4")
    p(f"s_lshl_b32 s{S_T1}, s{S_W}, 2")
    p(f"s_add_u32 s{S_T0}, s{S_T0}, s{S_T1}")
    p(f"s_mul_i32 s{S_T0}, s{S_T0}, {56*1024}")
    p(f"s_mul_i32 s{S_T1}, s{S_FS}, {7*256}")
    p(f"s_add_u32 s{S_T0}, s{S_T0}, s{S_T1}")
    p(f"s_add_u32 s{S_T0}, s{S_T0}, {WS_HMF}")
    p("v_lshrrev_b32 v246, 5, v2")
    p(f"v_mul_u32_u24 v246, {56*1024}, v246")
    p("v_and_b32 v247, 15, v2")
    p("v_lshl_add_u32 v246, v247, 4, v246")
    p("v_and_b32 v247, 1, v3")
    p("v_lshl_add_u32 v246, v247, 3, v246")
    p(f"v_add_u32 v246, s{S_T0}, v246")
    p(f"v_add_u32 v247, {2*56*1024}, v246")
    p("s_waitcnt lgkmcnt(0)")
    for j in range(7):
        for P in range(2):
            a = ACC + (j * 4 + 2 * P) * 4; b = a + 4
            for r in range(4): p(f"v_permlane32_swap_b32 v{a+r}, v{b+r}")
            for q in range(2):
                p(f"v_pk_fma_f32 v[{a+2*q}:{a+2*q+1}], v[{CS+8*j+2*q}:{CS+8*j+2*q+1}], v[{M+2*P}:{M+2*P+1}], v[{a+2*q}:{a+2*q+1}]")
                p(f"v_pk_fma_f32 v[{b+2*q}:{b+2*q+1}], v[{CS+8*j+4+2*q}:{CS+8*j+4+2*q+1}], v[{M+2*P}:{M+2*P+1}], v[{b+2*q}:{b+2*q+1}]")
            for r in range(4): p(f"v_max_f32 v{a+r}, 0, v{a+r}")
            for q in range(2):
                p(f"v_pk_mul_f32 v[{a+2*q}:{a+2*q+1}], v[{a+2*q}:{a+2*q+1}], v[{b+2*q}:{b+2*q+1}]")
            p(f"v_cvt_pk_bf16_f32 v{b}, v{a}, v{a+1}")
            p(f"v_cvt_pk_bf16_f32 v{b+1}, v{a+2}, v{a+3}")
            p(f"global_store_dwordx2 v{246+P}, v[{b}:{b+1}], {sp(P_WS)} offset:{256*j}")
    ts(p, 3, 1)
    ts_flush(p, 1, P_WS, S_W)
    p("s_endpgm")

    p.raw("L_k2_load:")
    p(f"s_sub_u32 s{S_LV}, s{S_W}, 4")
    p("s_waitcnt lgkmcnt(0)")
    for base, ptr, n in ((56, P_WS, WS_SIZE), (60, P_WG, 448 * 3584), (64, P_WU, 448 * 3584), (68, P_WD, 1792 * 896)):
        p(f"s_mov_b32 s{base}, s{ptr}\ns_mov_b32 s{base+1}, s{ptr+1}\ns_mov_b32 s{base+2}, {n}\ns_mov_b32 s{base+3}, 0x00020000")
    p("v_lshrrev_b32 v3, 5, v2")
    p("v_bfe_u32 v4, v2, 1, 4")
    p("v_and_b32 v5, 1, v2")
    p(f"s_lshl_b32 s{S_T0}, s{S_LV}, 15")
    p(f"s_lshl_b32 s{S_T1}, s{S_RB}, 9")
    p(f"s_add_u32 s{S_T0}, s{S_T0}, s{S_T1}")
    p(f"s_add_u32 s{S_T0}, s{S_T0}, {WS_HT}")
    for i in range(4):
        p(f"v_add_u32 v6, {2*i}, v3")
        p("v_xor_b32 v7, v6, v4")
        p("v_lshlrev_b32 v7, 5, v7")
        p("v_lshl_add_u32 v7, v5, 4, v7")
        p("v_lshl_add_u32 v7, v6, 12, v7")
        p(f"v_add_u32 v{8+i}, s{S_T0}, v7")
    assert all(((q * 9363) >> 16) == q // 7 for q in range(256))
    p(f"s_lshl_b32 s{S_T0}, s{S_LV}, 6")
    p(f"v_add_u32 v6, s{S_T0}, v2")
    p("v_mul_u32_u24 v7, 9363, v6")
    p("v_lshrrev_b32 v7, 16, v7")
    p("v_mul_u32_u24 v13, 7, v7")
    p("v_sub_u32 v13, v6, v13")
    p("v_mul_u32_u24 v12, 3584, v7")
    p("v_lshl_add_u32 v12, v13, 4, v12")
    p(f"s_mul_i32 s{S_T0}, s{S_FS}, 112")
    p(f"v_add_u32 v12, s{S_T0}, v12")
    p(f"s_cmp_eq_u32 s{S_LV}, 3")
    p("s_cselect_b32 s73, 0, -1")
    p(f"s_lshl_b32 s74, s{S_LV}, 12")
    p(f"s_lshl_b32 s75, s{S_LV}, 10")
    def dma(s):
        st = (s % NST) * STG
        p(f"s_mov_b32 s{S_T1}, {s*32*4096}")
        for i in range(4):
            p(f"s_add_u32 m0, s74, {st + 1024*i}")
            p(f"buffer_load_dwordx4 v{8+i}, s[56:59], s{S_T1} offen lds")
        p(f"s_mov_b32 s{S_T1}, {s*32*3584}")
        p("s_mov_b32 exec_hi, s73")
        p(f"s_add_u32 m0, s75, {st + 16384}")
        p(f"buffer_load_dwordx4 v12, s[60:63], s{S_T1} offen lds")
        p(f"s_add_u32 m0, s75, {st + 16384 + UPOFF}")
        p(f"buffer_load_dwordx4 v12, s[64:67], s{S_T1} offen lds")
        p("s_mov_b32 exec_hi, -1")
    for s in range(NST): dma(s)
    ts(p, 1, 1)
    p("v_and_b32 v6, 31, v2")
    p("v_and_b32 v7, 7, v2")
    p(f"s_lshr_b32 s{S_T0}, s{S_FS}, 1")
    p(f"v_xor_b32 v7, s{S_T0}, v7")
    p("v_lshlrev_b32 v7, 5, v7")
    p("v_lshl_add_u32 v7, v6, 9, v7")
    p(f"s_and_b32 s{S_T0}, s{S_FS}, 1")
    p(f"s_lshl_b32 s{S_T0}, s{S_T0}, 4")
    p(f"v_add_u32 v14, s{S_T0}, v7")
    for b in (1, 2): p(f"v_add_u32 v{14+b}, {2*STG*b}, v14")
    for i in range(16): p(f"v_mov_b32 v{32+i}, 0")
    def stats(s):
        st = s % NST
        p(f"ds_read_b128 v[20:23], v{14 + st // 2} offset:{(st % 2) * STG}")
        p("s_waitcnt lgkmcnt(0)")
        for i in range(4):
            p(f"v_lshlrev_b32 v{24+2*i}, 16, v{20+i}")
            p(f"v_and_b32 v{25+2*i}, 0xffff0000, v{20+i}")
        for i in range(4):
            p(f"v_pk_add_f32 v[{32+2*i}:{33+2*i}], v[{32+2*i}:{33+2*i}], v[{24+2*i}:{25+2*i}]")
            p(f"v_pk_fma_f32 v[{40+2*i}:{41+2*i}], v[{24+2*i}:{25+2*i}], v[{24+2*i}:{25+2*i}], v[{40+2*i}:{41+2*i}]")
    issued = NST
    for s in range(9):
        rem = issued - (s + 1)
        p(f"s_waitcnt vmcnt({6*rem})")
        p("s_barrier")
        if s >= 1:
            dma(issued); issued += 1
        p(f"s_cmp_lg_u32 s{S_LV}, 1")
        p(f"s_cbranch_scc1 L_k2_ns{s}")
        stats(s)
        p.raw(f"L_k2_ns{s}:")
    assert issued == 14
    def tail_barriers(extra, do_stats=False):
        for s in range(9, 14):
            p(f"s_waitcnt vmcnt({6*(13-s) + extra})")
            p("s_barrier")
            if do_stats: stats(s)
    p(f"s_cmp_eq_u32 s{S_LV}, 1")
    p("s_cbranch_scc1 L_k2_role1")
    p(f"s_cmp_eq_u32 s{S_LV}, 2")
    p("s_cbranch_scc1 L_k2_role2")
    p(f"s_cmp_eq_u32 s{S_LV}, 3")
    p("s_cbranch_scc1 L_k2_role3")
    p("v_min_u32 v6, 55, v2")
    p("v_cmp_lt_u32 vcc, 27, v6")
    p(f"v_mov_b32 v17, {7168 - 28*8}")
    p("v_cndmask_b32 v17, 0, v17, vcc")
    p("v_lshl_add_u32 v17, v6, 3, v17")
    p(f"s_mul_i32 s{S_T1}, s{S_FS}, 224")
    p(f"s_add_u32 s{S_T1}, s{S_T1}, {WS_PCS}")
    p(f"v_add_u32 v17, s{S_T1}, v17")
    for i in range(32):
        p(f"s_mov_b32 s{S_T1}, {i*14336}")
        p(f"buffer_load_dwordx2 v[{48+2*i}:{49+2*i}], v17, s[56:59], s{S_T1} offen")
    tail_barriers(32)
    p("s_waitcnt vmcnt(0)")
    for i in range(2, 32):
        p(f"v_pk_add_f32 v[{48+2*(i&1)}:{49+2*(i&1)}], v[{48+2*(i&1)}:{49+2*(i&1)}], v[{48+2*i}:{49+2*i}]")
    p("v_pk_add_f32 v[48:49], v[48:49], v[50:51]")
    p("v_lshlrev_b32 v6, 3, v6")
    p(f"v_add_u32 v6, {L2_CS}, v6")
    p("ds_write_b64 v6, v[48:49]")
    p("s_waitcnt lgkmcnt(0)")
    p("s_barrier")
    p("s_branch L_k2_ldone")
    p.raw("L_k2_role1:")
    tail_barriers(0, True)
    p("s_barrier")
    for i in range(16):
        r = 32 + i
        p(f"v_add_f32_dpp v{r}, v{r}, v{r} quad_perm:[1,0,3,2] row_mask:0xf bank_mask:0xf")
    for i in range(16):
        r = 32 + i
        p(f"v_add_f32_dpp v{r}, v{r}, v{r} quad_perm:[2,3,0,1] row_mask:0xf bank_mask:0xf")
    for i in range(16):
        r = 32 + i
        p(f"v_add_f32_dpp v{r}, v{r}, v{r} row_half_mirror row_mask:0xf bank_mask:0xf")
    for i in range(16):
        r = 32 + i
        p(f"v_add_f32_dpp v{r}, v{r}, v{r} row_mirror row_mask:0xf bank_mask:0xf")
    for i in range(16):
        r = 32 + i
        p(f"v_add_f32_dpp v{r}, v{r}, v{r} row_bcast:15 row_mask:0xa bank_mask:0xf")
    for i in range(8):
        sm, sq = 32 + i, 40 + i
        p(f"v_mul_f32 v{sm}, {hx(f32(1.0/448))}, v{sm}")
        p(f"v_mul_f32 v{sq}, {hx(f32(1.0/448))}, v{sq}")
        p(f"v_fma_f32 v{sq}, -v{sm}, v{sm}, v{sq}")
        p(f"v_max_f32 v{sq}, 0, v{sq}")
        p(f"v_cvt_pk_bf16_f32 v{sq}, v{sq}, v{sq}")
        p(f"v_lshlrev_b32 v{sq}, 16, v{sq}")
        p(f"v_add_f32 v{sq}, {hx(f32(1e-5))}, v{sq}")
        p(f"v_cvt_pk_bf16_f32 v{sq}, v{sq}, v{sq}")
        p(f"v_lshlrev_b32 v{sq}, 16, v{sq}")
        p(f"v_sqrt_f32 v{sq}, v{sq}")
        p(f"v_cvt_pk_bf16_f32 v{sq}, v{sq}, v{sq}")
        p(f"v_lshlrev_b32 v{sq}, 16, v{sq}")
        p(f"v_mul_f32 v{sq}, v{sq}, v{sq}")
        p(f"v_rcp_f32 v{sq}, v{sq}")
    p(f"s_lshl_b32 s{S_T0}, s{S_RB}, 10")
    p(f"s_lshl_b32 s{S_T1}, s{S_FS}, 5")
    p(f"s_add_u32 s{S_T0}, s{S_T0}, s{S_T1}")
    p(f"s_add_u32 s{S_T0}, s{S_T0}, {WS_RS2}")
    p(f"v_mov_b32 v6, s{S_T0}")
    p("s_mov_b64 exec, 0x10000")
    p(f"global_store_dwordx4 v6, v[40:43], {sp(P_WS)}")
    p(f"global_store_dwordx4 v6, v[44:47], {sp(P_WS)} offset:16")
    p("s_mov_b64 exec, -1")
    p("s_branch L_k2_ldone")
    p.raw("L_k2_role2:")
    assert all(((q * 4682) >> 16) == q // 14 for q in range(512))
    p(f"s_lshr_b32 s{S_T0}, s2, 2")
    p(f"s_mul_i32 s{S_T0}, s{S_T0}, {32*896}")
    p(f"s_and_b32 s{S_T1}, s2, 3")
    p(f"s_mul_i32 s{S_T1}, s{S_T1}, 224")
    p(f"s_add_u32 s{S_T0}, s{S_T0}, s{S_T1}")
    for i in range(7):
        p(f"v_add_u32 v6, {64*i}, v2")
        p("v_mul_u32_u24 v7, 4682, v6")
        p("v_lshrrev_b32 v7, 16, v7")
        p("v_mul_u32_u24 v18, 14, v7")
        p("v_sub_u32 v18, v6, v18")
        p("v_mul_u32_u24 v7, 896, v7")
        p("v_lshl_add_u32 v7, v18, 4, v7")
        p(f"s_mov_b32 m0, {L2_WD + 1024*i}")
        p(f"buffer_load_dwordx4 v7, s[68:71], s{S_T0} offen lds")
    tail_barriers(7)
    p("s_barrier")
    p("v_lshrrev_b32 v6, 4, v2")
    p("v_lshlrev_b32 v6, 3, v6")
    p("v_bfe_u32 v7, v2, 2, 2")
    p("v_add_u32 v6, v6, v7")
    p("v_mul_u32_u24 v6, 224, v6")
    p("v_and_b32 v7, 3, v2")
    p("v_lshl_add_u32 v6, v7, 3, v6")
    p(f"v_add_u32 v6, {L2_WD}, v6")
    p("s_waitcnt vmcnt(0)")
    for i in range(7):
        p(f"ds_read_b64_tr_b16 v[{48+4*i}:{49+4*i}], v6 offset:{32*i}")
        p(f"ds_read_b64_tr_b16 v[{50+4*i}:{51+4*i}], v6 offset:{32*i + 4*224}")
    p(f"s_and_b32 s{S_T1}, s2, 3")
    p(f"s_mul_i32 s{S_T1}, s{S_T1}, {7*56}")
    p(f"s_lshr_b32 s{S_T0}, s2, 2")
    p(f"s_add_u32 s{S_T1}, s{S_T1}, s{S_T0}")
    p(f"s_lshl_b32 s{S_T1}, s{S_T1}, 10")
    p(f"s_add_u32 s{S_T1}, s{S_T1}, {WS_WDF}")
    p(f"v_lshl_add_u32 v7, v2, 4, s{S_T1}")
    p("s_cmp_ge_u32 s2, 224")
    p("s_cbranch_scc1 L_k2_ldone")
    p("s_waitcnt lgkmcnt(0)")
    for i in range(7):
        p(f"global_store_dwordx4 v7, v[{48+4*i}:{51+4*i}], {sp(P_WS)}")
        if i < 6: p(f"v_add_u32 v7, {56*1024}, v7")
    p("s_branch L_k2_ldone")
    p.raw("L_k2_role3:")
    tail_barriers(0)
    p("s_barrier")
    p.raw("L_k2_ldone:")
    ts(p, 3, 1)
    ts_flush(p, 1, P_WS, S_W)
    p.raw(f"L_{name}_exit:")
    p("s_endpgm")

L3_RED = 0
L3_END = 131072

def gen_k3(p):
    name = "k3_kernel"
    prologue(p, name, 224)
    ts(p, 0, 2)
    S_W, S_TG, S_DG, S_T0, S_T1, S_A, S_B = 48, 49, 50, 51, 52, 53, 54
    p("v_lshrrev_b32 v1, 6, v0")
    p("v_and_b32 v2, 63, v0")
    p(f"v_readfirstlane_b32 s{S_W}, v1")
    p(f"s_and_b32 s{S_T0}, s2, 7")
    p(f"s_lshr_b32 s{S_T1}, s2, 3")
    p(f"s_and_b32 s{S_TG}, s{S_T1}, 3")
    p(f"s_lshl_b32 s{S_T0}, s{S_T0}, 2")
    p(f"s_add_u32 s{S_TG}, s{S_TG}, s{S_T0}")
    p(f"s_lshr_b32 s{S_DG}, s{S_T1}, 2")
    p(f"s_mul_i32 s{S_T0}, s{S_W}, 7168")
    p(f"v_lshl_add_u32 v3, v2, 4, s{S_T0}")
    p(f"s_mul_i32 s{S_A}, s{S_DG}, {4*57344}")
    p(f"s_add_u32 s{S_A}, s{S_A}, {WS_WDF}")
    p(f"s_mul_i32 s{S_B}, s{S_TG}, {4*57344}")
    p(f"s_add_u32 s{S_B}, s{S_B}, {WS_HMF}")
    p("s_waitcnt lgkmcnt(0)")
    p(f"s_mov_b32 s56, s{P_WS}\ns_mov_b32 s57, s{P_WS+1}\ns_mov_b32 s58, {WS_SIZE}\ns_mov_b32 s59, 0x00020000")
    NSET = 5
    FR = 8
    ACC = 168
    def loads(ks):
        fr = FR + 32 * (ks % NSET)
        for j in range(4):
            p(f"s_add_u32 s{S_T0}, s{S_A}, {j*57344 + ks*1024}")
            p(f"buffer_load_dwordx4 v[{fr+4*j}:{fr+4*j+3}], v3, s[56:59], s{S_T0} offen")
            p(f"s_add_u32 s{S_T0}, s{S_B}, {j*57344 + ks*1024}")
            p(f"buffer_load_dwordx4 v[{fr+16+4*j}:{fr+16+4*j+3}], v3, s[56:59], s{S_T0} offen")
    for ks in range(NSET): loads(ks)
    issued = NSET
    for ks in range(7):
        p(f"s_waitcnt vmcnt({8*(issued-ks-1)})")
        fr = FR + 32 * (ks % NSET)
        for j in range(4):
            for t in range(4):
                d = ACC + (j * 4 + t) * 4
                p(f"v_mfma_f32_16x16x32_bf16 {vr(d,4)}, {vr(fr+4*j,4)}, {vr(fr+16+4*t,4)}, {'0' if ks == 0 else vr(d,4)}")
        if issued < 7:
            loads(issued); issued += 1
    ts(p, 1, 2)
    p("v_and_b32 v4, 15, v2")
    p("v_lshrrev_b32 v5, 4, v2")
    p(f"s_lshr_b32 s{S_T0}, s{S_W}, 1")
    p(f"s_lshl_b32 s{S_T0}, s{S_T0}, 4")
    p(f"s_lshl_b32 s{S_T1}, s{S_DG}, 6")
    p(f"s_add_u32 s60, s{S_T0}, s{S_T1}")
    p(f"s_and_b32 s{S_T0}, s{S_W}, 1")
    p(f"s_lshl_b32 s{S_T0}, s{S_T0}, 5")
    p(f"s_lshl_b32 s{S_T1}, s{S_TG}, 6")
    p(f"s_add_u32 s61, s{S_T0}, s{S_T1}")
    p("v_add_u32 v6, s61, v4")
    p("v_lshl_add_u32 v7, v5, 2, s60")
    p("v_lshlrev_b32 v8, 12, v7")
    p("v_lshl_add_u32 v8, v6, 1, v8")
    p(f"v_add_u32 v8, {WS_HT}, v8")
    for t in range(2):
        for r in range(4):
            p(f"s_mov_b32 s{S_T0}, {4096*r + 32*t}")
            p(f"buffer_load_ushort v{16+4*t+r}, v8, s[56:59], s{S_T0} offen")
    p("v_lshlrev_b32 v9, 2, v6")
    p(f"v_add_u32 v9, {WS_RS2}, v9")
    p("buffer_load_dword v24, v9, s[56:59], 0 offen")
    p("buffer_load_dword v25, v9, s[56:59], 0 offen offset:64")
    p(f"s_lshl_b32 s{S_T0}, s{S_W}, 14")
    p(f"v_lshl_add_u32 v10, v2, 4, s{S_T0}")
    for i in range(16):
        p(f"ds_write_b128 v10, v[{ACC+4*i}:{ACC+4*i+3}] offset:{1024*i}")
    p(f"s_lshl_b32 s{S_T0}, s{S_W}, 11")
    p(f"v_lshl_add_u32 v11, v2, 4, s{S_T0}")
    p("v_add_u32 v12, 65536, v11")
    p("v_mul_u32_u24 v13, 896, v6")
    p("v_lshl_add_u32 v13, v7, 1, v13")
    p("s_waitcnt lgkmcnt(0)")
    p("s_barrier")
    for t in range(2):
        for src in range(8):
            r = 32 + (t * 8 + src) * 4
            p(f"ds_read_b128 v[{r}:{r+3}], v{11 + src // 4} offset:{(src % 4) * 16384 + t * 1024}")
    for t in range(2):
        p(f"s_waitcnt lgkmcnt({8*(1-t)})")
        b = 32 + t * 32
        for st in (4, 2, 1):
            for i in range(st):
                for q in range(2):
                    x = b + 4 * i + 2 * q; y = b + 4 * (i + st) + 2 * q
                    p(f"v_pk_add_f32 v[{x}:{x+1}], v[{x}:{x+1}], v[{y}:{y+1}]")
        if t == 0: p("s_waitcnt vmcnt(0)")
        for r in range(4): p(f"v_mul_f32 v{b+r}, v{24+t}, v{b+r}")
        p(f"v_cvt_pk_bf16_f32 v{b+4}, v{b}, v{b+1}")
        p(f"v_cvt_pk_bf16_f32 v{b+5}, v{b+2}, v{b+3}")
        for r in range(4):
            src = b + 4 + r // 2
            p(f"v_lshlrev_b32 v{b+r}, 16, v{src}" if r % 2 == 0 else f"v_and_b32 v{b+r}, 0xffff0000, v{src}")
            p(f"v_lshlrev_b32 v{16+4*t+r}, 16, v{16+4*t+r}")
            p(f"v_add_f32 v{b+r}, v{b+r}, v{16+4*t+r}")
        p(f"v_cvt_pk_bf16_f32 v{b+4}, v{b}, v{b+1}")
        p(f"v_cvt_pk_bf16_f32 v{b+5}, v{b+2}, v{b+3}")
        if t == 1: p(f"v_add_u32 v13, {16*896}, v13")
        p(f"global_store_dwordx2 v13, v[{b+4}:{b+5}], {sp(P_OUT)}")
    ts(p, 2, 2)
    ts_flush(p, 2, P_WS, S_W)
    p.raw(f"L_{name}_exit:")
    p("s_endpgm")

def launches(): return [("k2_kernel", 256, 512, L2_END), ("k3_kernel", 224, 512, L3_END)]
def gen():
    p = Prog(); gen_k2(p); t = p.render()
    p = Prog(); gen_k3(p); t += p.render()
    return t, kd("k2_kernel", 256, 102) + kd("k3_kernel", 256, 102)
```

```python
import sys, struct
import numpy as np
from asmgen import *

NAME = "sequential_preLN__ssm_conv_s4__glu_gated_reglu__prompt"
DIAG = "--diag" in sys.argv

WS_EPOCH = 0
WS_ST1 = 0x1000
WS_ST2 = 0x6000
WS_CS = 0xB000
WS_HT = 0x10000
WS_WDF = 0x200000
WS_HMF = 0x400000
WS_PCS = 0xB00000
WS_TS = 0xC00000
WS_SIZE = 0x1000000

def f32(x): return struct.unpack("<I", struct.pack("<f", x))[0]
def hx(x): return "0x%08x" % x
LOG2E = 1.4426950408889634
L2E_HI = float(np.float32(LOG2E)); L2E_LO = float(np.float32(LOG2E - L2E_HI))

def bf16_round_int(l):
    u = np.float32(l).view(np.uint32)
    r = ((int(u) + 0x7FFF + ((int(u) >> 16) & 1)) >> 16) << 16
    return int(np.uint32(r).view(np.float32))

HI0 = [1, 2, 3, 4, 5, 6, 7, 8, 258, 260, 262, 264, 516, 520, 772, 776]
HI1 = [1032, 1288, 1544, 1800, 0]
def kacc_addr(t):
    cands = []
    for Mt, rows in ((0, HI0), (1, HI1)):
        for row, hi in enumerate(rows):
            if t >= hi and (t - hi) % 8 == 0 and (t - hi) // 8 < 32:
                q = (t - hi) // 8
                cands.append((Mt * 2 + (q >> 4)) * 1024 + ((row >> 2) * 16 + (q & 15)) * 16 + (row & 3) * 4)
    assert cands, t
    return cands[0]
def gather_table():
    tab = []
    for x in range(2048 + 8):
        tab.append(kacc_addr(bf16_round_int(2047 - x)) if x <= 2047 else 4096)
    return tab

TPITCH = 1040
TB = 55120
L_TAB = 0
L_PX = 0
L_KACC = 2 * TB
KACC_CH = 4096 + 64
L_KE = L_KACC + 2 * KACC_CH
KCOPY = 4096 + 64 + 64
KE_CH = 2 * KCOPY
L_U = L_KE + 2 * KE_CH
U_CH = 512 + 4096
L_X = L_U + 2 * U_CH
L_K1_END = L_X + 2 * 4096
assert L_KACC % 16 == 0 and L_KE % 16 == 0 and L_U % 16 == 0 and L_X % 16 == 0
assert L_K1_END <= 163840, L_K1_END
O_OFF = 4096 + 64
assert (O_OFF // 4) % 32 == 16 and O_OFF + 4096 + 64 <= KE_CH

def cmul(p, d, a, b, conj=False, tmp=None):
    t = tmp if tmp is not None else d
    p(f"v_pk_mul_f32 {vr(t,2)}, {vr(a,2)}, {vr(b,2)} op_sel:[0,0] op_sel_hi:[1,0]")
    neg = "neg_hi" if conj else "neg_lo"
    p(f"v_pk_fma_f32 {vr(d,2)}, {vr(a,2)}, {vr(b,2)}, {vr(t,2)} op_sel:[1,1,0] op_sel_hi:[0,1,1] {neg}:[1,0,0]")

def ts(p, slot, kern, sreg=96):
    if not DIAG: return
    p(f"s_memrealtime s[{sreg}:{sreg+1}]")
    p("s_waitcnt lgkmcnt(0)")
    p(f"v_writelane_b32 v255, s{sreg}, {slot}")

def tsc(p, slot, sreg=96):
    if not DIAG: return
    p(f"s_memtime s[{sreg}:{sreg+1}]")
    p("s_waitcnt lgkmcnt(0)")
    p(f"v_writelane_b32 v255, s{sreg}, {slot}")

def ts_flush(p, kern, ws_pair, wave_sreg):
    if not DIAG: return
    lab = f"L_ts_{kern}_{len(p.items)}"
    p(f"s_lshl_b32 s96, s2, 3")
    p(f"s_add_u32 s96, s96, s{wave_sreg}")
    p(f"s_lshl_b32 s96, s96, 6")
    p(f"s_add_u32 s96, s96, {WS_TS + kern * 0x40000}")
    p(f"v_mbcnt_lo_u32_b32 v254, -1, 0")
    p(f"v_mbcnt_hi_u32_b32 v254, -1, v254")
    p(f"v_lshl_add_u32 v254, v254, 2, s96")
    p(f"s_mov_b64 exec, 0xffff")
    p(f"global_store_dword v254, v255, s[{ws_pair}:{ws_pair+1}]")
    p(f"s_mov_b64 exec, -1")

P_X, P_ARE, P_AIM, P_BRE, P_BIM, P_CRE, P_CIM, P_LDT = [16 + 2 * i for i in range(8)]
P_DSK, P_BX, P_WG, P_WU, P_WD, P_OUT, P_DBG, P_WS = [32 + 2 * i for i in range(8)]
def sp(b): return f"s[{b}:{b+1}]"

def prologue(p, name, nwg):
    p.raw(f".globl {name}\n.p2align 8\n.type {name},@function\n{name}:")
    p(f"s_cmp_ge_u32 s2, {nwg}")
    p(f"s_cbranch_scc1 L_{name}_exit")
    p("s_load_dwordx16 s[16:31], s[0:1], 0")
    p("s_load_dwordx16 s[32:47], s[0:1], 64")

def gen_k1(p):
    name = "k1_kernel"
    prologue(p, name, 256)
    p("s_getpc_b64 s[60:61]")
    p.raw("L_k1_pc0:")
    p("v_lshlrev_b32 v1, 7, v0")
    p("v_cmp_gt_u32 vcc, k1_code_end-L_k1_pc0, v1")
    p("s_and_saveexec_b64 s[62:63], vcc")
    p("s_cbranch_execz L_k1_nopf")
    p("global_load_dword v25, v1, s[60:61]")
    p.raw("L_k1_nopf:")
    p("s_mov_b64 exec, -1")
    ts(p, 0, 0)
    S_W, S_CH, S_V, S_CP, S_D, S_TAG, S_T0, S_T1, S_T2, S_LDT, S_DSK = 48, 49, 50, 51, 52, 53, 54, 55, 56, 57, 58
    p("v_lshrrev_b32 v1, 6, v0")
    p("v_and_b32 v2, 63, v0")
    p(f"v_readfirstlane_b32 s{S_W}, v1")
    p(f"s_and_b32 s{S_T0}, s2, 7")
    p(f"s_lshr_b32 s{S_T1}, s2, 3")
    p(f"s_cmp_ge_u32 s{S_T1}, 28")
    p("s_cbranch_scc1 L_k1_aux")
    p(f"s_mul_i32 s{S_CP}, s{S_T0}, 28")
    p(f"s_add_u32 s{S_CP}, s{S_CP}, s{S_T1}")
    p(f"s_lshr_b32 s{S_CH}, s{S_W}, 2")
    p(f"s_and_b32 s{S_V}, s{S_W}, 3")
    p(f"s_lshl_b32 s{S_D}, s{S_CP}, 1")
    p(f"s_add_u32 s{S_D}, s{S_D}, s{S_CH}")
    p(f"s_lshl_b32 s{S_T0}, s{S_D}, 9")
    p(f"s_lshl_b32 s{S_T1}, s{S_V}, 7")
    p(f"s_add_u32 s{S_T0}, s{S_T0}, s{S_T1}")
    p(f"v_lshl_add_u32 v3, v2, 1, s{S_T0}")
    p(f"s_lshl_b32 s{S_T1}, s{S_CP}, 2")
    p("v_mul_u32_u24 v4, 3584, v0" if "--nogather" not in sys.argv else "v_mul_u32_u24 v4, 4, v0")
    p(f"v_add_u32 v4, s{S_T1}, v4")
    p("s_add_u32 s60, s60, k1_gtab-L_k1_pc0")
    p("s_addc_u32 s61, s61, 0")
    p("v_and_b32 v5, 255, v0")
    p("v_lshlrev_b32 v5, 4, v5")
    p("s_waitcnt lgkmcnt(0)")
    VP = 8
    for i, ptr in enumerate((P_ARE, P_AIM, P_BRE, P_BIM, P_CRE, P_CIM)):
        p(f"global_load_ushort v{VP+i}, v3, {sp(ptr)}")
    ts(p, 8, 0)
    p(f"s_add_u32 s62, s{P_LDT}, s{S_T1}")
    p(f"s_addc_u32 s63, s{P_LDT+1}, 0")
    p(f"s_load_dword s{S_LDT}, s[62:63], 0")
    p(f"s_add_u32 s64, s{P_DSK}, s{S_T1}")
    p(f"s_addc_u32 s65, s{P_DSK+1}, 0")
    p(f"s_load_dword s{S_DSK}, s[64:65], 0")
    p(f"s_load_dword s{S_TAG}, {sp(P_WS)}, {WS_EPOCH}")
    VX = 16
    p(f"s_lshr_b32 s{S_T2}, s2, 3")
    p(f"s_lshl_b32 s{S_T2}, s{S_T2}, 9")
    p(f"v_add_u32 v26, s{S_T2}, v0")
    p("v_lshrrev_b32 v27, 2, v26")
    p("v_and_b32 v27, 2047, v27")
    p("v_mul_u32_u24 v27, 896, v27")
    p("v_and_b32 v26, 3, v26")
    p("v_mul_u32_u24 v26, 36, v26")
    p(f"s_and_b32 s{S_T2}, s2, 7")
    p(f"s_mul_i32 s{S_T2}, s{S_T2}, 112")
    p(f"v_add3_u32 v27, v27, v26, s{S_T2}")
    p(f"global_load_dword v25, v27, {sp(P_X)}")
    VG = 20
    p(f"global_load_dwordx4 v[{VG}:{VG+3}], v5, s[60:61]")
    p(f"global_load_ushort v{VG+4}, v5, s[60:61] offset:16")
    ts(p, 9, 0)
    p("v_mov_b32 v28, 0\nv_mov_b32 v29, 0\nv_mov_b32 v30, 0\nv_mov_b32 v31, 0")
    p("v_lshlrev_b32 v26, 4, v2")
    p("s_mov_b64 exec, 0xf")
    for ch in range(2):
        p(f"v_add_u32 v27, {L_KACC + ch*KACC_CH + 4096}, v26")
        p("ds_write_b128 v27, v[28:31]")
        for cp_off in (0, O_OFF):
            p(f"v_add_u32 v27, {L_KE + ch*KE_CH + cp_off + 4096}, v26")
            p("ds_write_b128 v27, v[28:31]")
    p("s_mov_b32 exec_lo, -1")
    p("s_mov_b32 exec_hi, 0")
    for ch in range(2):
        p(f"v_add_u32 v27, {L_U + ch*U_CH}, v26")
        p("ds_write_b128 v27, v[28:31]")
    p("s_mov_b64 exec, -1")
    p(f"s_mul_i32 s{S_T0}, s{S_CH}, {TB}")
    p(f"s_lshl_b32 s{S_T1}, s{S_V}, 8")
    p(f"s_add_u32 s{S_T0}, s{S_T0}, s{S_T1}")
    p(f"s_mov_b32 m0, s{S_T0}")
    VT = 32
    p("v_and_b32 v33, 15, v2")
    p("v_lshrrev_b32 v34, 4, v2")
    p(f"v_mul_u32_u24 v{VT}, {TPITCH}, v33")
    p(f"v_lshl_add_u32 v{VT}, v34, 8, v{VT}")
    p(f"s_mul_i32 s{S_T0}, s{S_CH}, {TB}")
    p(f"s_and_b32 s{S_T1}, s{S_V}, 1")
    p(f"s_mul_i32 s{S_T1}, s{S_T1}, {16*TPITCH}")
    p(f"s_add_u32 s{S_T1}, s{S_T1}, s{S_T0}")
    p(f"v_add_u32 v{VT+3}, s{S_T1}, v{VT}")
    p(f"s_lshr_b32 s{S_T1}, s{S_V}, 1")
    p(f"s_mul_i32 s{S_T1}, s{S_T1}, {16*TPITCH}")
    p(f"s_add_u32 s{S_T1}, s{S_T1}, s{S_T0}")
    p(f"s_add_u32 s{S_T1}, s{S_T1}, {32*TPITCH}")
    p(f"v_add_u32 v{VT}, s{S_T1}, v{VT}")
    p("s_waitcnt lgkmcnt(0)")
    ts(p, 10, 0)
    p(f"s_add_u32 s{S_TAG}, s{S_TAG}, 2")
    p(f"s_or_b32 s{S_TAG}, s{S_TAG}, 1")
    p(f"s_lshl_b32 s{S_T1}, s{S_CH}, 4")
    p(f"s_lshr_b32 s{S_LDT}, s{S_LDT}, s{S_T1}")
    p(f"s_lshl_b32 s{S_LDT}, s{S_LDT}, 16")
    p(f"s_lshr_b32 s{S_DSK}, s{S_DSK}, s{S_T1}")
    p(f"s_lshl_b32 s{S_DSK}, s{S_DSK}, 16")
    p(f"v_mov_b32 v36, s{S_LDT}")
    p(f"v_mov_b32 v37, {hx(f32(L2E_HI))}")
    p("v_mul_f32 v38, v36, v37")
    p("v_fma_f32 v39, v36, v37, -v38")
    p(f"v_fmac_f32 v39, {hx(f32(L2E_LO))}, v36")
    p("v_exp_f32 v38, v38")
    p(f"v_mul_f32 v39, {hx(f32(0.6931471805599453))}, v39")
    p("v_fma_f32 v38, v38, v39, v38")
    p("v_cvt_pk_bf16_f32 v38, v38, v38")
    p("v_lshlrev_b32 v36, 16, v38")
    ts(p, 11, 0)
    p("s_waitcnt vmcnt(3)")
    ts(p, 1, 0)
    for i in range(6): p(f"v_lshlrev_b32 v{VP+i}, 16, v{VP+i}")
    p(f"v_mul_f32 v{VP}, v36, v{VP}")
    p(f"v_mul_f32 v{VP+1}, v36, v{VP+1}")
    p(f"v_mul_f32 v{VP+2}, v36, v{VP+2}")
    p(f"v_mul_f32 v{VP+3}, v36, v{VP+3}")
    p(f"v_mul_f32 v{VP}, v37, v{VP}")
    p(f"v_mul_f32 v{VP+1}, 0.15915494, v{VP+1}")
    Z1, Z8, Z256, ZL2 = 40, 42, 44, 46
    for Z, T in ((Z8, 8.0), (Z1, 1.0), (Z256, 256.0)):
        if T == 1.0:
            p(f"v_exp_f32 v48, v{VP}")
            p(f"v_fract_f32 v49, v{VP+1}")
        else:
            p(f"v_mul_f32 v48, {hx(f32(T))}, v{VP}")
            p(f"v_mul_f32 v49, {hx(f32(T))}, v{VP+1}")
            p("v_exp_f32 v48, v48")
            p("v_fract_f32 v49, v49")
        p(f"v_cos_f32 v{Z}, v49")
        p(f"v_sin_f32 v{Z+1}, v49")
        p(f"v_mul_f32 v{Z}, v48, v{Z}")
        p(f"v_mul_f32 v{Z+1}, v48, v{Z+1}")
    H = 50
    cmul(p, H, VP + 4, VP + 2)
    p(f"v_xor_b32 v{H+1}, 0x80000000, v{H+1}")
    def put(row, z, tmp):
        p(f"v_cvt_pk_bf16_f32 v{tmp}, v{z}, v{z+1}")
        p(f"ds_write_addtid_b32 v{tmp} offset:{row*TPITCH}")
    tmpc = [0]
    def nt():
        tmpc[0] = (tmpc[0] + 1) % 8
        return 100 + tmpc[0]
    p("v_mov_b32 v99, 0x00003f80")
    p("ds_write_addtid_b32 v99 offset:0")
    put(52, H, nt())
    put(1, Z8, nt())
    cmul(p, ZL2, Z8, Z8)
    LA = [70, 72]; LB = [74, 76]
    lo_ops = []
    cur_e, cur_o = ZL2, Z8
    for q in range(2, 32):
        if q == 2:
            lo_ops.append(("put", 2, ZL2))
        elif q % 2 == 0:
            dst = LA[(q // 2) % 2]; lo_ops.append(("mul", q, dst, cur_e)); cur_e = dst
        else:
            dst = LB[(q // 2) % 2]; lo_ops.append(("mul", q, dst, cur_o)); cur_o = dst
    G = 80
    hi_ops = []
    for e in range(1, 9): hi_ops.append((32 + e - 1, H + 2 * e, H + 2 * (e - 1), Z1))
    hi_ops += [(40, G, H + 4, Z256), (41, G + 2, H + 8, Z256), (42, G + 4, H + 12, Z256), (43, G + 6, H + 16, Z256),
               (44, G + 8, G + 2, Z256), (45, G + 10, G + 6, Z256), (46, G + 12, G + 8, Z256), (47, G + 14, G + 10, Z256),
               (48, G + 16, G + 14, Z256), (49, G, G + 16, Z256), (50, G + 2, G, Z256), (51, G + 4, G + 2, Z256)]
    li = hi_i = 0
    while li < len(lo_ops) or hi_i < len(hi_ops):
        for _ in range(3 if hi_i % 2 else 1):
            if li < len(lo_ops):
                o = lo_ops[li]; li += 1
                if o[0] == "put": put(o[1], o[2], nt())
                else:
                    cmul(p, o[2], o[3], ZL2); put(o[1], o[2], nt())
        if hi_i < len(hi_ops):
            row, dst, src, z = hi_ops[hi_i]; hi_i += 1
            cmul(p, dst, src, z, conj=True); put(row, dst, nt())
            if hi_i in (1, 5, 9, 13):
                j = (hi_i - 1) // 4
                p(f"global_load_dword v{VX+j}, v4, {sp(P_X)} offset:{896*j}")
    ts(p, 2, 0)
    VS = 108
    p("v_lshlrev_b32 v6, 5, v0")
    p(f"v_add_u32 v6, {WS_ST1}, v6")
    p(f"global_load_dwordx4 v[{VS}:{VS+3}], v6, {sp(P_WS)} sc1")
    p(f"global_load_dwordx4 v[{VS+4}:{VS+7}], v6, {sp(P_WS)} offset:16 sc1")
    p("s_waitcnt lgkmcnt(0)")
    p("s_barrier")
    F = 124
    KA = 120
    for s_ in range(16):
        p(f"ds_read_b128 v[{F+8*s_}:{F+8*s_+3}], v{VT} offset:{16*s_}")
        p(f"ds_read_b128 v[{F+8*s_+4}:{F+8*s_+7}], v{VT+3} offset:{16*s_}")
    for s_ in range(16):
        p(f"s_waitcnt lgkmcnt({min(15, 2*(15-s_))})")
        c = "0" if s_ == 0 else vr(KA, 4)
        p(f"v_mfma_f32_16x16x32_bf16 {vr(KA,4)}, {vr(F+8*s_,4)}, {vr(F+8*s_+4,4)}, {c}")
    p(f"s_mul_i32 s{S_T0}, s{S_CH}, {KACC_CH}")
    p(f"s_add_u32 s{S_T0}, s{S_T0}, {L_KACC}")
    p(f"v_add_u32 v7, s{S_T0}, v5")
    p(f"ds_write_b128 v7, v[{KA}:{KA+3}]")
    p("s_waitcnt vmcnt(2)")
    ts(p, 12, 0)
    p.raw("L_k1_poll:")
    p("s_waitcnt vmcnt(0)")
    p(f"v_cmp_ne_u32 vcc, s{S_TAG}, v{VS+1}")
    p(f"v_cmp_ne_u32 s[66:67], s{S_TAG}, v{VS+3}")
    p("s_or_b64 vcc, vcc, s[66:67]")
    p(f"v_cmp_ne_u32 s[66:67], s{S_TAG}, v{VS+5}")
    p("s_or_b64 vcc, vcc, s[66:67]")
    p(f"v_cmp_ne_u32 s[66:67], s{S_TAG}, v{VS+7}")
    p("s_or_b64 vcc, vcc, s[66:67]")
    p("s_cbranch_vccz L_k1_polldone")
    p("v_mov_b32 v116, 0")
    p(f"global_load_dword v117, v116, {sp(P_DBG)} sc1")
    p(f"global_load_dwordx4 v[{VS}:{VS+3}], v6, {sp(P_WS)} sc1")
    p(f"global_load_dwordx4 v[{VS+4}:{VS+7}], v6, {sp(P_WS)} offset:16 sc1")
    p("s_waitcnt vmcnt(2)")
    p(f"v_readfirstlane_b32 s{S_T1}, v117")
    p(f"s_cmp_eq_u32 s{S_T1}, 0")
    p(f"s_cselect_b32 s{S_TAG}, s{S_TAG}, s{S_T1}")
    p("s_branch L_k1_poll")
    p.raw("L_k1_polldone:")
    ts(p, 3, 0)
    U0, U1 = 116, 100
    for j in range(4):
        g = VS + 2 * j
        p(f"v_lshlrev_b32 v124, 16, v{g}")
        p(f"v_and_b32 v125, 0xffff0000, v{g}")
        p("v_rcp_f32 v125, v125")
        p(f"v_lshlrev_b32 v126, 16, v{VX+j}")
        p(f"v_and_b32 v127, 0xffff0000, v{VX+j}")
        p("v_sub_f32 v126, v126, v124")
        p("v_sub_f32 v127, v127, v124")
        p("v_cvt_pk_bf16_f32 v126, v126, v127")
        p("v_and_b32 v127, 0xffff0000, v126")
        p("v_lshlrev_b32 v126, 16, v126")
        p(f"v_mul_f32 v{U0+j}, v126, v125")
        p(f"v_mul_f32 v{U1+j}, v127, v125")
    p(f"v_cvt_pk_bf16_f32 v{U0}, v{U0}, v{U0+1}")
    p(f"v_cvt_pk_bf16_f32 v{U0+1}, v{U0+2}, v{U0+3}")
    p(f"v_cvt_pk_bf16_f32 v{U1}, v{U1}, v{U1+1}")
    p(f"v_cvt_pk_bf16_f32 v{U1+1}, v{U1+2}, v{U1+3}")
    p("v_lshlrev_b32 v26, 3, v0")
    p(f"v_add_u32 v27, {L_U + 512}, v26")
    p(f"ds_write_b64 v27, v[{U0}:{U0+1}]")
    p(f"ds_write_b64 v27, v[{U1}:{U1+1}] offset:{U_CH}")
    p("s_mov_b32 s66, 0x05040100")
    p("s_mov_b32 s67, 0x07060302")
    p(f"v_perm_b32 v124, v{VX+1}, v{VX}, s66")
    p(f"v_perm_b32 v125, v{VX+3}, v{VX+2}, s66")
    p(f"v_perm_b32 v126, v{VX+1}, v{VX}, s67")
    p(f"v_perm_b32 v127, v{VX+3}, v{VX+2}, s67")
    p(f"ds_write_b64 v27, v[124:125] offset:{L_X - L_U - 512}")
    p(f"ds_write_b64 v27, v[126:127] offset:{L_X - L_U - 512 + 4096}")
    GA = 128
    for i in range(4):
        p(f"v_and_b32 v{GA+2*i}, 0xffff, v{VG+i}")
        p(f"v_lshrrev_b32 v{GA+2*i+1}, 16, v{VG+i}")
    p(f"v_mov_b32 v{GA+8}, v{VG+4}")
    for i in range(9): p(f"v_add_u32 v{GA+i}, s{S_T0}, v{GA+i}")
    p("s_waitcnt lgkmcnt(0)")
    p("s_barrier")
    ts(p, 4, 0)
    p("s_cmp_lg_u32 s2, 0")
    p("s_cbranch_scc1 L_k1_nobump")
    p(f"s_cmp_lg_u32 s{S_W}, 0")
    p("s_cbranch_scc1 L_k1_nobump")
    p("v_mov_b32 v116, 0")
    p(f"v_mov_b32 v117, s{S_TAG}")
    p(f"global_store_dword v116, v117, {sp(P_DBG)} sc1")
    p("s_waitcnt vmcnt(0)")
    p(f"global_store_dword v116, v117, {sp(P_WS)} offset:{WS_EPOCH} sc1")
    p.raw("L_k1_nobump:")
    GV = 140
    for i in range(9): p(f"ds_read_b32 v{GV+i}, v{GA+i}")
    p(f"s_mul_i32 s{S_T0}, s{S_CH}, {KE_CH}")
    p(f"s_add_u32 s{S_T0}, s{S_T0}, {L_KE}")
    p(f"v_add_u32 v27, s{S_T0}, v5")
    p("s_waitcnt lgkmcnt(0)")
    for i in range(4):
        p(f"v_cvt_pk_bf16_f32 v{152+i}, v{GV+2*i}, v{GV+2*i+1}")
        p(f"v_cvt_pk_bf16_f32 v{156+i}, v{GV+2*i+1}, v{GV+2*i+2}")
    p("ds_write_b128 v27, v[152:155]")
    p(f"ds_write_b128 v27, v[156:159] offset:{O_OFF}")
    VA = 36
    p("v_lshlrev_b32 v35, 3, v34")
    p("v_sub_u32 v35, v35, v33")
    p("v_add_u32 v35, 2031, v35")
    p("v_and_b32 v35, -2, v35")
    p("v_lshlrev_b32 v35, 1, v35")
    p("v_and_b32 v26, 1, v33")
    p("v_sub_u32 v26, 1, v26")
    p(f"v_mul_u32_u24 v26, {O_OFF}, v26")
    p(f"s_lshl_b32 s{S_T1}, s{S_V}, 7")
    p(f"s_sub_u32 s{S_T0}, s{S_T0}, s{S_T1}")
    p(f"s_sub_u32 s{S_T0}, s{S_T0}, {64 + 512}")
    p(f"v_add3_u32 v{VA}, v35, v26, s{S_T0}")
    for k in range(1, 4): p(f"v_subrev_u32 v{VA+k}, {1024*k}, v{VA}")
    VB = 40
    p(f"s_mul_i32 s{S_T0}, s{S_CH}, {U_CH}")
    p(f"s_add_u32 s{S_T0}, s{S_T0}, {L_U + 512 - 32 - 64}")
    p(f"s_sub_u32 s{S_T0}, s{S_T0}, s{S_T1}")
    p("v_lshlrev_b32 v26, 5, v33")
    p("v_lshl_add_u32 v26, v34, 4, v26")
    p(f"v_add_u32 v{VB}, s{S_T0}, v26")
    p("s_waitcnt lgkmcnt(0)")
    p("s_barrier")
    ts(p, 5, 0)
    tsc(p, 14)
    FA = [64, 128]; FB = [96, 160]
    ACC = 192
    def ld(rr, k):
        a = FA[rr] + 4 * k
        o = (1 - (k & 1)) * 128 + (1 - rr) * 16
        b = FB[rr] + 4 * k
        return [f"ds_read2_b32 v[{a}:{a+1}], v{VA + (k >> 1)} offset0:{o} offset1:{o+1}",
                f"ds_read2_b32 v[{a+2}:{a+3}], v{VA + (k >> 1)} offset0:{o+2} offset1:{o+3}",
                f"ds_read_b128 v[{b}:{b+3}], v{VB} offset:{512*k + (1-rr)*64}"]
    seq = [(rr, k) for rr in range(2) for k in range(8)]
    AHEAD = 5
    for i in range(AHEAD):
        for x in ld(*seq[i]): p(x)
    pend = []
    for j in range(AHEAD, len(seq)): pend += ld(*seq[j])
    issued = 3 * AHEAD
    first = set()
    for i, (rr, k) in enumerate(seq):
        needn = 3 * (i + 1)
        while issued < needn + 3 and pend:
            p(pend.pop(0)); issued += 1
        p(f"s_waitcnt lgkmcnt({min(15, issued - needn)})")
        pairs = [(k, q) for q in range(k + 1) if k + q <= 7] + [(m, k) for m in range(k) if m + k <= 7]
        for (m, q) in pairs:
            n = m + q
            d = ACC + 4 * n
            c = vr(d, 4) if n in first else "0"
            first.add(n)
            p(f"v_mfma_f32_16x16x32_bf16 {vr(d,4)}, {vr(FA[rr]+4*m,4)}, {vr(FB[rr]+4*q,4)}, {c}")
            if pend and issued - needn < 14:
                p(pend.pop(0)); issued += 1
    ts(p, 6, 0)
    tsc(p, 15)
    p(f"s_lshl_b32 s{S_T0}, s{S_W}, 13")
    p(f"v_lshl_add_u32 v26, v2, 4, s{S_T0}")
    for n in range(8):
        p(f"ds_write_b128 v26, v[{ACC+4*n}:{ACC+4*n+3}] offset:{L_PX + n*1024}")
    p(f"s_lshl_b32 s{S_T0}, s{S_CH}, 15")
    p(f"s_lshl_b32 s{S_T1}, s{S_V}, 11")
    p(f"s_add_u32 s{S_T0}, s{S_T0}, s{S_T1}")
    p(f"v_lshl_add_u32 v27, v2, 4, s{S_T0}")
    p("v_lshlrev_b32 v28, 5, v33")
    p("v_lshl_add_u32 v28, v34, 3, v28")
    p(f"s_lshl_b32 s{S_T1}, s{S_V}, 10")
    p(f"v_add_u32 v28, s{S_T1}, v28")
    p(f"s_mul_i32 s{S_T0}, s{S_CH}, {U_CH}")
    p(f"s_add_u32 s{S_T0}, s{S_T0}, {L_U + 512}")
    p(f"v_add_u32 v29, s{S_T0}, v28")
    p(f"s_lshl_b32 s{S_T0}, s{S_CH}, 12")
    p(f"s_add_u32 s{S_T0}, s{S_T0}, {L_X}")
    p(f"v_add_u32 v30, s{S_T0}, v28")
    p("ds_read_b64 v[44:45], v29")
    p("ds_read_b64 v[46:47], v29 offset:512")
    p("ds_read_b64 v[48:49], v30")
    p("ds_read_b64 v[50:51], v30 offset:512")
    p(f"s_lshl_b32 s{S_T0}, s{S_D}, 12")
    p(f"s_add_u32 s{S_T0}, s{S_T0}, {WS_HT}")
    p(f"v_add_u32 v28, s{S_T0}, v28")
    p("s_waitcnt lgkmcnt(0)")
    p("s_barrier")
    for t in range(2):
        for src in range(4):
            r = 64 + (t * 4 + src) * 4
            p(f"ds_read_b128 v[{r}:{r+3}], v27 offset:{L_PX + src*8192 + t*1024}")
    for t in range(2):
        p(f"s_waitcnt lgkmcnt({4*(1-t)})")
        b = 64 + t * 16
        p(f"v_pk_add_f32 v[{b}:{b+1}], v[{b}:{b+1}], v[{b+4}:{b+5}]")
        p(f"v_pk_add_f32 v[{b+2}:{b+3}], v[{b+2}:{b+3}], v[{b+6}:{b+7}]")
        p(f"v_pk_add_f32 v[{b+8}:{b+9}], v[{b+8}:{b+9}], v[{b+12}:{b+13}]")
        p(f"v_pk_add_f32 v[{b+10}:{b+11}], v[{b+10}:{b+11}], v[{b+14}:{b+15}]")
        p(f"v_pk_add_f32 v[{b}:{b+1}], v[{b}:{b+1}], v[{b+8}:{b+9}]")
        p(f"v_pk_add_f32 v[{b+2}:{b+3}], v[{b+2}:{b+3}], v[{b+10}:{b+11}]")
        for pr in range(2):
            y0, y1 = b + 2 * pr, b + 2 * pr + 1
            uu = 44 + 2 * t + pr; xx = 48 + 2 * t + pr
            p(f"v_cvt_pk_bf16_f32 v100, v{y0}, v{y1}")
            p(f"v_lshlrev_b32 v101, 16, v{uu}")
            p(f"v_and_b32 v102, 0xffff0000, v{uu}")
            p(f"v_mul_f32 v101, s{S_DSK}, v101")
            p(f"v_mul_f32 v102, s{S_DSK}, v102")
            p("v_cvt_pk_bf16_f32 v101, v101, v102")
            p("v_lshlrev_b32 v102, 16, v100")
            p("v_and_b32 v100, 0xffff0000, v100")
            p("v_lshlrev_b32 v103, 16, v101")
            p("v_and_b32 v101, 0xffff0000, v101")
            p("v_add_f32 v102, v102, v103")
            p("v_add_f32 v100, v100, v101")
            p("v_cvt_pk_bf16_f32 v100, v102, v100")
            p(f"v_lshlrev_b32 v102, 16, v{xx}")
            p(f"v_and_b32 v103, 0xffff0000, v{xx}")
            p("v_lshlrev_b32 v101, 16, v100")
            p("v_and_b32 v100, 0xffff0000, v100")
            p("v_add_f32 v102, v102, v101")
            p("v_add_f32 v103, v103, v100")
            p(f"v_cvt_pk_bf16_f32 v{104+2*t+pr}, v102, v103")
        p(f"global_store_dwordx2 v28, v[{104+2*t}:{105+2*t}], {sp(P_WS)} offset:{512*t}")
    ts(p, 7, 0)
    ts_flush(p, 0, P_WS, S_W)
    p("s_endpgm")

    p.raw("L_k1_aux:")
    S_A = 51
    p(f"s_lshl_b32 s{S_A}, s{S_T0}, 2")
    p(f"s_add_u32 s{S_A}, s{S_A}, s{S_T1}")
    p(f"s_sub_u32 s{S_A}, s{S_A}, 28")
    p(f"s_lshl_b32 s{S_T0}, s{S_A}, 6")
    p(f"s_lshl_b32 s{S_T1}, s{S_W}, 3")
    p(f"s_add_u32 s{S_T0}, s{S_T0}, s{S_T1}")
    p("v_lshrrev_b32 v3, 3, v2")
    p(f"v_add_u32 v3, s{S_T0}, v3")
    p("v_mul_u32_u24 v4, 896, v3")
    p("v_and_b32 v5, 7, v2")
    p("v_lshl_add_u32 v4, v5, 4, v4")
    p("s_waitcnt lgkmcnt(0)")
    for i in range(7):
        p(f"global_load_dwordx4 v[{8+4*i}:{11+4*i}], v4, {sp(P_X)} offset:{128*i}")
    p(f"s_load_dword s{S_TAG}, {sp(P_WS)}, {WS_EPOCH}")
    p("s_waitcnt vmcnt(0) lgkmcnt(0)")
    p(f"s_add_u32 s{S_TAG}, s{S_TAG}, 2")
    p(f"s_or_b32 s{S_TAG}, s{S_TAG}, 1")
    for i in range(28):
        p(f"v_lshlrev_b32 v{40+2*i}, 16, v{8+i}")
        p(f"v_and_b32 v{41+2*i}, 0xffff0000, v{8+i}")
    p("v_pk_add_f32 v[8:9], v[40:41], v[42:43]")
    p("v_pk_add_f32 v[10:11], v[44:45], v[46:47]")
    for i in range(4, 28, 2):
        p(f"v_pk_add_f32 v[8:9], v[8:9], v[{40+2*i}:{41+2*i}]")
        p(f"v_pk_add_f32 v[10:11], v[10:11], v[{42+2*i}:{43+2*i}]")
    p("v_pk_add_f32 v[8:9], v[8:9], v[10:11]")
    p("v_add_f32 v8, v8, v9")
    def red8(r):
        p(f"v_add_f32_dpp v{r}, v{r}, v{r} quad_perm:[1,0,3,2] row_mask:0xf bank_mask:0xf")
        p(f"v_add_f32_dpp v{r}, v{r}, v{r} quad_perm:[2,3,0,1] row_mask:0xf bank_mask:0xf")
        p(f"v_add_f32_dpp v{r}, v{r}, v{r} row_half_mirror row_mask:0xf bank_mask:0xf")
    red8(8)
    p(f"v_mul_f32 v8, {hx(f32(1.0/448))}, v8")
    p("v_mov_b32 v9, v8")
    p("v_mov_b32 v12, 0\nv_mov_b32 v13, 0\nv_mov_b32 v14, 0\nv_mov_b32 v15, 0")
    for i in range(28):
        a = 40 + 2 * i; acc = 12 + 2 * (i & 1)
        p(f"v_pk_add_f32 v[{a}:{a+1}], v[{a}:{a+1}], v[8:9] neg_lo:[0,1] neg_hi:[0,1]")
        p(f"v_pk_fma_f32 v[{acc}:{acc+1}], v[{a}:{a+1}], v[{a}:{a+1}], v[{acc}:{acc+1}]")
    p("v_pk_add_f32 v[12:13], v[12:13], v[14:15]")
    p("v_add_f32 v12, v12, v13")
    red8(12)
    p(f"v_mul_f32 v12, {hx(f32(1.0/448))}, v12")
    p("v_cvt_pk_bf16_f32 v12, v12, v12")
    p("v_lshlrev_b32 v12, 16, v12")
    p(f"v_add_f32 v12, {hx(f32(1e-5))}, v12")
    p("v_cvt_pk_bf16_f32 v12, v12, v12")
    p("v_lshlrev_b32 v12, 16, v12")
    p("v_sqrt_f32 v12, v12")
    p("v_cvt_pk_bf16_f32 v12, v8, v12")
    p(f"v_mov_b32 v13, s{S_TAG}")
    p("v_lshlrev_b32 v3, 3, v3")
    p(f"v_add_u32 v3, {WS_ST1}, v3")
    p("s_mov_b32 exec_lo, 0x01010101")
    p("s_mov_b32 exec_hi, 0x01010101")
    p(f"global_store_dwordx2 v3, v[12:13], {sp(P_WS)} sc1")
    p("s_mov_b64 exec, -1")
    ts(p, 1, 0)
    p("s_barrier")
    assert all(((t * 1171) >> 16) == t // 56 for t in range(512))
    p("v_mul_u32_u24 v6, 1171, v0")
    p("v_lshrrev_b32 v6, 16, v6")
    p("v_mul_u32_u24 v7, 56, v6")
    p("v_sub_u32 v7, v0, v7")
    p("v_min_u32 v6, 7, v6")
    p("v_cmp_lt_u32 vcc, 27, v7")
    p("v_subrev_u32 v8, 28, v7")
    p("v_cndmask_b32 v8, v7, v8, vcc")
    p(f"v_mov_b32 v10, s{P_WG}")
    p(f"v_mov_b32 v11, s{P_WG+1}")
    p(f"v_mov_b32 v12, s{P_WU}")
    p(f"v_mov_b32 v13, s{P_WU+1}")
    p("v_cndmask_b32 v10, v10, v12, vcc")
    p("v_cndmask_b32 v11, v11, v13, vcc")
    p(f"v_mov_b32 v14, 7168")
    p("v_cndmask_b32 v14, 0, v14, vcc")
    p(f"s_and_b32 s{S_T0}, s{S_A}, 3")
    p(f"s_mul_i32 s{S_T1}, s{S_T0}, {112*3584}")
    p(f"s_lshr_b32 s{S_T2}, s{S_A}, 2")
    p(f"s_mul_i32 s66, s{S_T2}, 448")
    p(f"s_add_u32 s{S_T1}, s{S_T1}, s66")
    p(f"v_mul_u32_u24 v9, {14*3584}, v6")
    p("v_lshl_add_u32 v9, v8, 4, v9")
    p(f"v_add_u32 v9, s{S_T1}, v9")
    p("v_add_co_u32 v10, vcc, v10, v9")
    p("v_addc_co_u32 v11, vcc, 0, v11, vcc")
    for i in range(14):
        p(f"global_load_dwordx4 v[{104+4*i}:{107+4*i}], v[10:11], off")
        if i < 13:
            p("v_add_co_u32 v10, vcc, 3584, v10")
            p("v_addc_co_u32 v11, vcc, 0, v11, vcc")
    p(f"s_lshl_b32 s{S_T0}, s{S_T0}, 3")
    p(f"v_add_u32 v6, s{S_T0}, v6")
    p("v_mul_u32_u24 v6, 14336, v6")
    p("v_lshl_add_u32 v6, v8, 5, v6")
    p(f"s_mul_i32 s66, s{S_T2}, 896")
    p(f"s_add_u32 s66, s66, {WS_PCS}")
    p("v_add3_u32 v6, v6, v14, s66")
    for i in range(14):
        p(f"s_waitcnt vmcnt({13-i})")
        for k in range(4):
            d = 16 if i == 0 else 24
            p(f"v_lshlrev_b32 v{d+2*k}, 16, v{104+4*i+k}")
            p(f"v_and_b32 v{d+1+2*k}, 0xffff0000, v{104+4*i+k}")
            if i: p(f"v_pk_add_f32 v[{16+2*k}:{17+2*k}], v[{16+2*k}:{17+2*k}], v[{24+2*k}:{25+2*k}]")
    p("v_cmp_gt_u32 vcc, 448, v0")
    p("s_and_saveexec_b64 s[66:67], vcc")
    p("s_cbranch_execz L_k1_auxdone")
    p(f"global_store_dwordx4 v6, v[16:19], {sp(P_WS)}")
    p(f"global_store_dwordx4 v6, v[20:23], {sp(P_WS)} offset:16")
    p.raw("L_k1_auxdone:")
    p("s_mov_b64 exec, -1")
    ts(p, 7, 0)
    ts_flush(p, 0, P_WS, S_W)
    p.raw(f"L_{name}_exit:")
    p("s_endpgm")
    tab = gather_table()
    p.raw(".p2align 4\n.type k1_gtab,@object\nk1_gtab:")
    for i in range(0, len(tab), 8):
        p.raw(".short " + ", ".join(str(v) for v in tab[i:i+8]))
    p.raw(f".size k1_gtab, {2*len(tab)}")
    p.raw("k1_code_end:")

def main():
    hdr = open(f"cdna_kernels/{NAME}.s.ref").read().split("; Override launch")[0]
    launches = [("k1_kernel", 256, 512, L_K1_END)]
    try:
        import gen23
        launches += gen23.launches()
    except ImportError:
        gen23 = None
    out = hdr
    for k, g, b, l in launches:
        out += f"; @launch kernel={k} grid=({g},1,1) block=({b},1,1) lds={l}\n"
    out += '.amdgcn_target "amdgcn-amd-amdhsa--gfx950"\n.text\n'
    p = Prog(); gen_k1(p); out += p.render()
    kds = kd("k1_kernel", 256, 102)
    if gen23:
        t, k = gen23.gen(); out += t; kds += k
    out += '.section .rodata,"a"\n' + kds
    dst = sys.argv[1] if len(sys.argv) > 1 and not sys.argv[1].startswith("--") else f"cdna_kernels/{NAME}.s"
    open(dst, "w").write(out)
    print("wrote", dst, len(out), "bytes; K1 LDS", L_K1_END)

if __name__ == "__main__":
    main()
```

```python
import sys
from asmgen import *
import gen as G
from gen import *

WS_RS2 = WS_ST2

NST = 6
UPOFF = 3584 + 128
STG = 16384 + UPOFF + 3584
L2_WD = NST * STG
L2_CS = L2_WD + 7168
L2_END = L2_CS + 512
assert L2_END <= 163840

def gen_k2(p):
    name = "k2_kernel"
    prologue(p, name, 256)
    ts(p, 0, 1)
    S_W, S_FS, S_RB, S_T0, S_T1, S_T2, S_LV = 48, 49, 50, 51, 52, 53, 54
    p("v_lshrrev_b32 v1, 6, v0")
    p("v_and_b32 v2, 63, v0")
    p(f"v_readfirstlane_b32 s{S_W}, v1")
    p(f"s_and_b32 s{S_T0}, s2, 7")
    p(f"s_lshr_b32 s{S_T1}, s2, 3")
    p(f"s_and_b32 s{S_FS}, s{S_T1}, 3")
    p(f"s_lshl_b32 s{S_T0}, s{S_T0}, 2")
    p(f"s_add_u32 s{S_FS}, s{S_FS}, s{S_T0}")
    p(f"s_lshr_b32 s{S_RB}, s{S_T1}, 2")
    p(f"s_cmp_ge_u32 s{S_W}, 4")
    p("s_cbranch_scc1 L_k2_load")
    FR = [8, 52]
    AH = 96
    AW = 108
    ONES = 112
    SUM = 116
    ACC = 132
    p("v_lshrrev_b32 v3, 4, v2")
    p("v_bfe_u32 v4, v2, 2, 2")
    p("v_and_b32 v5, 3, v2")
    p("v_lshl_add_u32 v6, v3, 2, v4")
    p("v_and_b32 v7, 7, v6")
    for t in range(4):
        p(f"s_lshl_b32 s{S_T0}, s{S_W}, 2")
        p(f"s_add_u32 s{S_T0}, s{S_T0}, {t}")
        p(f"v_xor_b32 v244, s{S_T0}, v7")
        p("v_lshlrev_b32 v244, 5, v244")
        p("v_lshl_add_u32 v244, v6, 9, v244")
        p(f"v_lshl_add_u32 v{AH+t}, v5, 3, v244")
        for b in (1, 2): p(f"v_add_u32 v{AH+4*b+t}, {2*STG*b}, v{AH+t}")
    p("v_mul_u32_u24 v244, 112, v6")
    p("v_lshrrev_b32 v245, 1, v5")
    p(f"v_mul_u32_u24 v245, {UPOFF}, v245")
    p("v_and_b32 v246, 1, v5")
    p("v_lshlrev_b32 v246, 3, v246")
    p("v_add3_u32 v244, v244, v245, v246")
    p(f"v_add_u32 v{AW}, 16384, v244")
    for b in (1, 2): p(f"v_add_u32 v{AW+b}, {2*STG*b}, v{AW}")
    for i in range(4): p(f"v_mov_b32 v{ONES+i}, 0x3f803f80")
    def reads(s):
        st = s % NST; b = st // 2; o = (st % 2) * STG
        fr = FR[s & 1]
        out = []
        for t in range(4):
            r = fr + 28 + 4 * t
            out.append(f"ds_read_b64_tr_b16 v[{r}:{r+1}], v{AH+4*b+t} offset:{o}")
            out.append(f"ds_read_b64_tr_b16 v[{r+2}:{r+3}], v{AH+4*b+t} offset:{o+8192}")
        for j in range(7):
            r = fr + 4 * j
            out.append(f"ds_read_b64_tr_b16 v[{r}:{r+1}], v{AW+b} offset:{o+16*j}")
            out.append(f"ds_read_b64_tr_b16 v[{r+2}:{r+3}], v{AW+b} offset:{o+16*j+1792}")
        return out
    p("s_barrier")
    ts(p, 1, 1)
    for x in reads(0): p(x)
    p("s_waitcnt lgkmcnt(0)")
    for s in range(14):
        pend = []
        if s < 13:
            p("s_barrier")
            pend = reads(s + 1)
        fr = FR[s & 1]
        mf = []
        for t in range(4):
            d = SUM + 4 * t
            mf.append(f"v_mfma_f32_16x16x32_bf16 {vr(d,4)}, {vr(ONES,4)}, {vr(fr+28+4*t,4)}, {'0' if s == 0 else vr(d,4)}")
        for j in range(7):
            for t in range(4):
                d = ACC + (j * 4 + t) * 4
                mf.append(f"v_mfma_f32_16x16x32_bf16 {vr(d,4)}, {vr(fr+4*j,4)}, {vr(fr+28+4*t,4)}, {'0' if s == 0 else vr(d,4)}")
        for x in mf:
            p(x)
            if pend: p(pend.pop(0))
        if s < 13: p("s_waitcnt lgkmcnt(0)")
    ts(p, 2, 1)
    p("s_barrier")
    p("v_and_b32 v244, 1, v3")
    p("v_lshlrev_b32 v244, 4, v244")
    p(f"v_add_u32 v244, {L2_CS}, v244")
    CS = 8
    for j in range(7):
        p(f"ds_read_b128 v[{CS+8*j}:{CS+8*j+3}], v244 offset:{32*j}")
        p(f"ds_read_b128 v[{CS+8*j+4}:{CS+8*j+7}], v244 offset:{224+32*j}")
    p("v_cmp_gt_u32 vcc, 32, v2")
    M = 64
    for P in range(2):
        p(f"v_cndmask_b32 v245, v{SUM+4*(2*P+1)}, v{SUM+4*(2*P)}, vcc")
        p(f"v_mul_f32 v245, {hx(f32(1.0/448))}, v245")
        p("v_cvt_pk_bf16_f32 v245, v245, v245")
        p("v_lshlrev_b32 v245, 16, v245")
        p(f"v_xor_b32 v{M+2*P}, 0x80000000, v245")
        p(f"v_mov_b32 v{M+2*P+1}, v{M+2*P}")
    p(f"s_lshl_b32 s{S_T0}, s{S_RB}, 4")
    p(f"s_lshl_b32 s{S_T1}, s{S_W}, 2")
    p(f"s_add_u32 s{S_T0}, s{S_T0}, s{S_T1}")
    p(f"s_mul_i32 s{S_T0}, s{S_T0}, {56*1024}")
    p(f"s_mul_i32 s{S_T1}, s{S_FS}, {7*256}")
    p(f"s_add_u32 s{S_T0}, s{S_T0}, s{S_T1}")
    p(f"s_add_u32 s{S_T0}, s{S_T0}, {WS_HMF}")
    p("v_lshrrev_b32 v246, 5, v2")
    p(f"v_mul_u32_u24 v246, {56*1024}, v246")
    p("v_and_b32 v247, 15, v2")
    p("v_lshl_add_u32 v246, v247, 4, v246")
    p("v_and_b32 v247, 1, v3")
    p("v_lshl_add_u32 v246, v247, 3, v246")
    p(f"v_add_u32 v246, s{S_T0}, v246")
    p(f"v_add_u32 v247, {2*56*1024}, v246")
    p("s_waitcnt lgkmcnt(0)")
    for j in range(7):
        for P in range(2):
            a = ACC + (j * 4 + 2 * P) * 4; b = a + 4
            for r in range(4): p(f"v_permlane32_swap_b32 v{a+r}, v{b+r}")
            for q in range(2):
                p(f"v_pk_fma_f32 v[{a+2*q}:{a+2*q+1}], v[{CS+8*j+2*q}:{CS+8*j+2*q+1}], v[{M+2*P}:{M+2*P+1}], v[{a+2*q}:{a+2*q+1}]")
                p(f"v_pk_fma_f32 v[{b+2*q}:{b+2*q+1}], v[{CS+8*j+4+2*q}:{CS+8*j+4+2*q+1}], v[{M+2*P}:{M+2*P+1}], v[{b+2*q}:{b+2*q+1}]")
            for r in range(4): p(f"v_max_f32 v{a+r}, 0, v{a+r}")
            for q in range(2):
                p(f"v_pk_mul_f32 v[{a+2*q}:{a+2*q+1}], v[{a+2*q}:{a+2*q+1}], v[{b+2*q}:{b+2*q+1}]")
            p(f"v_cvt_pk_bf16_f32 v{b}, v{a}, v{a+1}")
            p(f"v_cvt_pk_bf16_f32 v{b+1}, v{a+2}, v{a+3}")
            p(f"global_store_dwordx2 v{246+P}, v[{b}:{b+1}], {sp(P_WS)} offset:{256*j}")
    ts(p, 3, 1)
    ts_flush(p, 1, P_WS, S_W)
    p("s_endpgm")

    p.raw("L_k2_load:")
    p(f"s_sub_u32 s{S_LV}, s{S_W}, 4")
    p("s_waitcnt lgkmcnt(0)")
    for base, ptr, n in ((56, P_WS, WS_SIZE), (60, P_WG, 448 * 3584), (64, P_WU, 448 * 3584), (68, P_WD, 1792 * 896)):
        p(f"s_mov_b32 s{base}, s{ptr}\ns_mov_b32 s{base+1}, s{ptr+1}\ns_mov_b32 s{base+2}, {n}\ns_mov_b32 s{base+3}, 0x00020000")
    p("v_lshrrev_b32 v3, 5, v2")
    p("v_bfe_u32 v4, v2, 1, 4")
    p("v_and_b32 v5, 1, v2")
    p(f"s_lshl_b32 s{S_T0}, s{S_LV}, 15")
    p(f"s_lshl_b32 s{S_T1}, s{S_RB}, 9")
    p(f"s_add_u32 s{S_T0}, s{S_T0}, s{S_T1}")
    p(f"s_add_u32 s{S_T0}, s{S_T0}, {WS_HT}")
    for i in range(4):
        p(f"v_add_u32 v6, {2*i}, v3")
        p("v_xor_b32 v7, v6, v4")
        p("v_lshlrev_b32 v7, 5, v7")
        p("v_lshl_add_u32 v7, v5, 4, v7")
        p("v_lshl_add_u32 v7, v6, 12, v7")
        p(f"v_add_u32 v{8+i}, s{S_T0}, v7")
    assert all(((q * 9363) >> 16) == q // 7 for q in range(256))
    p(f"s_lshl_b32 s{S_T0}, s{S_LV}, 6")
    p(f"v_add_u32 v6, s{S_T0}, v2")
    p("v_mul_u32_u24 v7, 9363, v6")
    p("v_lshrrev_b32 v7, 16, v7")
    p("v_mul_u32_u24 v13, 7, v7")
    p("v_sub_u32 v13, v6, v13")
    p("v_mul_u32_u24 v12, 3584, v7")
    p("v_lshl_add_u32 v12, v13, 4, v12")
    p(f"s_mul_i32 s{S_T0}, s{S_FS}, 112")
    p(f"v_add_u32 v12, s{S_T0}, v12")
    p(f"s_cmp_eq_u32 s{S_LV}, 3")
    p("s_cselect_b32 s73, 0, -1")
    p(f"s_lshl_b32 s74, s{S_LV}, 12")
    p(f"s_lshl_b32 s75, s{S_LV}, 10")
    def dma(s):
        st = (s % NST) * STG
        p(f"s_mov_b32 s{S_T1}, {s*32*4096}")
        for i in range(4):
            p(f"s_add_u32 m0, s74, {st + 1024*i}")
            p(f"buffer_load_dwordx4 v{8+i}, s[56:59], s{S_T1} offen lds")
        p(f"s_mov_b32 s{S_T1}, {s*32*3584}")
        p("s_mov_b32 exec_hi, s73")
        p(f"s_add_u32 m0, s75, {st + 16384}")
        p(f"buffer_load_dwordx4 v12, s[60:63], s{S_T1} offen lds")
        p(f"s_add_u32 m0, s75, {st + 16384 + UPOFF}")
        p(f"buffer_load_dwordx4 v12, s[64:67], s{S_T1} offen lds")
        p("s_mov_b32 exec_hi, -1")
    for s in range(NST): dma(s)
    ts(p, 1, 1)
    p("v_and_b32 v6, 31, v2")
    p("v_and_b32 v7, 7, v2")
    p(f"s_lshr_b32 s{S_T0}, s{S_FS}, 1")
    p(f"v_xor_b32 v7, s{S_T0}, v7")
    p("v_lshlrev_b32 v7, 5, v7")
    p("v_lshl_add_u32 v7, v6, 9, v7")
    p(f"s_and_b32 s{S_T0}, s{S_FS}, 1")
    p(f"s_lshl_b32 s{S_T0}, s{S_T0}, 4")
    p(f"v_add_u32 v14, s{S_T0}, v7")
    for b in (1, 2): p(f"v_add_u32 v{14+b}, {2*STG*b}, v14")
    for i in range(16): p(f"v_mov_b32 v{32+i}, 0")
    def stats(s):
        st = s % NST
        p(f"ds_read_b128 v[20:23], v{14 + st // 2} offset:{(st % 2) * STG}")
        p("s_waitcnt lgkmcnt(0)")
        for i in range(4):
            p(f"v_lshlrev_b32 v{24+2*i}, 16, v{20+i}")
            p(f"v_and_b32 v{25+2*i}, 0xffff0000, v{20+i}")
        for i in range(4):
            p(f"v_pk_add_f32 v[{32+2*i}:{33+2*i}], v[{32+2*i}:{33+2*i}], v[{24+2*i}:{25+2*i}]")
            p(f"v_pk_fma_f32 v[{40+2*i}:{41+2*i}], v[{24+2*i}:{25+2*i}], v[{24+2*i}:{25+2*i}], v[{40+2*i}:{41+2*i}]")
    issued = NST
    for s in range(9):
        rem = issued - (s + 1)
        p(f"s_waitcnt vmcnt({6*rem})")
        p("s_barrier")
        if s >= 1:
            dma(issued); issued += 1
        p(f"s_cmp_lg_u32 s{S_LV}, 1")
        p(f"s_cbranch_scc1 L_k2_ns{s}")
        stats(s)
        p.raw(f"L_k2_ns{s}:")
    assert issued == 14
    def tail_barriers(extra, do_stats=False):
        for s in range(9, 14):
            p(f"s_waitcnt vmcnt({6*(13-s) + extra})")
            p("s_barrier")
            if do_stats: stats(s)
    p(f"s_cmp_eq_u32 s{S_LV}, 1")
    p("s_cbranch_scc1 L_k2_role1")
    p(f"s_cmp_eq_u32 s{S_LV}, 2")
    p("s_cbranch_scc1 L_k2_role2")
    p(f"s_cmp_eq_u32 s{S_LV}, 3")
    p("s_cbranch_scc1 L_k2_role3")
    p("v_min_u32 v6, 55, v2")
    p("v_cmp_lt_u32 vcc, 27, v6")
    p(f"v_mov_b32 v17, {7168 - 28*8}")
    p("v_cndmask_b32 v17, 0, v17, vcc")
    p("v_lshl_add_u32 v17, v6, 3, v17")
    p(f"s_mul_i32 s{S_T1}, s{S_FS}, 224")
    p(f"s_add_u32 s{S_T1}, s{S_T1}, {WS_PCS}")
    p(f"v_add_u32 v17, s{S_T1}, v17")
    for i in range(32):
        p(f"s_mov_b32 s{S_T1}, {i*14336}")
        p(f"buffer_load_dwordx2 v[{48+2*i}:{49+2*i}], v17, s[56:59], s{S_T1} offen")
    tail_barriers(32)
    p("s_waitcnt vmcnt(0)")
    for i in range(2, 32):
        p(f"v_pk_add_f32 v[{48+2*(i&1)}:{49+2*(i&1)}], v[{48+2*(i&1)}:{49+2*(i&1)}], v[{48+2*i}:{49+2*i}]")
    p("v_pk_add_f32 v[48:49], v[48:49], v[50:51]")
    p("v_lshlrev_b32 v6, 3, v6")
    p(f"v_add_u32 v6, {L2_CS}, v6")
    p("ds_write_b64 v6, v[48:49]")
    p("s_waitcnt lgkmcnt(0)")
    p("s_barrier")
    p("s_branch L_k2_ldone")
    p.raw("L_k2_role1:")
    tail_barriers(0, True)
    p("s_barrier")
    for i in range(16):
        r = 32 + i
        p(f"v_add_f32_dpp v{r}, v{r}, v{r} quad_perm:[1,0,3,2] row_mask:0xf bank_mask:0xf")
    for i in range(16):
        r = 32 + i
        p(f"v_add_f32_dpp v{r}, v{r}, v{r} quad_perm:[2,3,0,1] row_mask:0xf bank_mask:0xf")
    for i in range(16):
        r = 32 + i
        p(f"v_add_f32_dpp v{r}, v{r}, v{r} row_half_mirror row_mask:0xf bank_mask:0xf")
    for i in range(16):
        r = 32 + i
        p(f"v_add_f32_dpp v{r}, v{r}, v{r} row_mirror row_mask:0xf bank_mask:0xf")
    for i in range(16):
        r = 32 + i
        p(f"v_add_f32_dpp v{r}, v{r}, v{r} row_bcast:15 row_mask:0xa bank_mask:0xf")
    for i in range(8):
        sm, sq = 32 + i, 40 + i
        p(f"v_mul_f32 v{sm}, {hx(f32(1.0/448))}, v{sm}")
        p(f"v_mul_f32 v{sq}, {hx(f32(1.0/448))}, v{sq}")
        p(f"v_fma_f32 v{sq}, -v{sm}, v{sm}, v{sq}")
        p(f"v_max_f32 v{sq}, 0, v{sq}")
        p(f"v_cvt_pk_bf16_f32 v{sq}, v{sq}, v{sq}")
        p(f"v_lshlrev_b32 v{sq}, 16, v{sq}")
        p(f"v_add_f32 v{sq}, {hx(f32(1e-5))}, v{sq}")
        p(f"v_cvt_pk_bf16_f32 v{sq}, v{sq}, v{sq}")
        p(f"v_lshlrev_b32 v{sq}, 16, v{sq}")
        p(f"v_sqrt_f32 v{sq}, v{sq}")
        p(f"v_cvt_pk_bf16_f32 v{sq}, v{sq}, v{sq}")
        p(f"v_lshlrev_b32 v{sq}, 16, v{sq}")
        p(f"v_mul_f32 v{sq}, v{sq}, v{sq}")
        p(f"v_rcp_f32 v{sq}, v{sq}")
    p(f"s_lshl_b32 s{S_T0}, s{S_RB}, 10")
    p(f"s_lshl_b32 s{S_T1}, s{S_FS}, 5")
    p(f"s_add_u32 s{S_T0}, s{S_T0}, s{S_T1}")
    p(f"s_add_u32 s{S_T0}, s{S_T0}, {WS_RS2}")
    p(f"v_mov_b32 v6, s{S_T0}")
    p("s_mov_b64 exec, 0x10000")
    p(f"global_store_dwordx4 v6, v[40:43], {sp(P_WS)}")
    p(f"global_store_dwordx4 v6, v[44:47], {sp(P_WS)} offset:16")
    p("s_mov_b64 exec, -1")
    p("s_branch L_k2_ldone")
    p.raw("L_k2_role2:")
    assert all(((q * 4682) >> 16) == q // 14 for q in range(512))
    p(f"s_lshr_b32 s{S_T0}, s2, 2")
    p(f"s_mul_i32 s{S_T0}, s{S_T0}, {32*896}")
    p(f"s_and_b32 s{S_T1}, s2, 3")
    p(f"s_mul_i32 s{S_T1}, s{S_T1}, 224")
    p(f"s_add_u32 s{S_T0}, s{S_T0}, s{S_T1}")
    for i in range(7):
        p(f"v_add_u32 v6, {64*i}, v2")
        p("v_mul_u32_u24 v7, 4682, v6")
        p("v_lshrrev_b32 v7, 16, v7")
        p("v_mul_u32_u24 v18, 14, v7")
        p("v_sub_u32 v18, v6, v18")
        p("v_mul_u32_u24 v7, 896, v7")
        p("v_lshl_add_u32 v7, v18, 4, v7")
        p(f"s_mov_b32 m0, {L2_WD + 1024*i}")
        p(f"buffer_load_dwordx4 v7, s[68:71], s{S_T0} offen lds")
    tail_barriers(7)
    p("s_barrier")
    p("v_lshrrev_b32 v6, 4, v2")
    p("v_lshlrev_b32 v6, 3, v6")
    p("v_bfe_u32 v7, v2, 2, 2")
    p("v_add_u32 v6, v6, v7")
    p("v_mul_u32_u24 v6, 224, v6")
    p("v_and_b32 v7, 3, v2")
    p("v_lshl_add_u32 v6, v7, 3, v6")
    p(f"v_add_u32 v6, {L2_WD}, v6")
    p("s_waitcnt vmcnt(0)")
    for i in range(7):
        p(f"ds_read_b64_tr_b16 v[{48+4*i}:{49+4*i}], v6 offset:{32*i}")
        p(f"ds_read_b64_tr_b16 v[{50+4*i}:{51+4*i}], v6 offset:{32*i + 4*224}")
    p(f"s_and_b32 s{S_T1}, s2, 3")
    p(f"s_mul_i32 s{S_T1}, s{S_T1}, {7*56}")
    p(f"s_lshr_b32 s{S_T0}, s2, 2")
    p(f"s_add_u32 s{S_T1}, s{S_T1}, s{S_T0}")
    p(f"s_lshl_b32 s{S_T1}, s{S_T1}, 10")
    p(f"s_add_u32 s{S_T1}, s{S_T1}, {WS_WDF}")
    p(f"v_lshl_add_u32 v7, v2, 4, s{S_T1}")
    p("s_cmp_ge_u32 s2, 224")
    p("s_cbranch_scc1 L_k2_ldone")
    p("s_waitcnt lgkmcnt(0)")
    for i in range(7):
        p(f"global_store_dwordx4 v7, v[{48+4*i}:{51+4*i}], {sp(P_WS)}")
        if i < 6: p(f"v_add_u32 v7, {56*1024}, v7")
    p("s_branch L_k2_ldone")
    p.raw("L_k2_role3:")
    tail_barriers(0)
    p("s_barrier")
    p.raw("L_k2_ldone:")
    ts(p, 3, 1)
    ts_flush(p, 1, P_WS, S_W)
    p.raw(f"L_{name}_exit:")
    p("s_endpgm")

L3_RED = 0
L3_END = 131072

def gen_k3(p):
    name = "k3_kernel"
    prologue(p, name, 224)
    ts(p, 0, 2)
    S_W, S_TG, S_DG, S_T0, S_T1, S_A, S_B = 48, 49, 50, 51, 52, 53, 54
    p("v_lshrrev_b32 v1, 6, v0")
    p("v_and_b32 v2, 63, v0")
    p(f"v_readfirstlane_b32 s{S_W}, v1")
    p(f"s_and_b32 s{S_T0}, s2, 7")
    p(f"s_lshr_b32 s{S_T1}, s2, 3")
    p(f"s_and_b32 s{S_TG}, s{S_T1}, 3")
    p(f"s_lshl_b32 s{S_T0}, s{S_T0}, 2")
    p(f"s_add_u32 s{S_TG}, s{S_TG}, s{S_T0}")
    p(f"s_lshr_b32 s{S_DG}, s{S_T1}, 2")
    p(f"s_mul_i32 s{S_T0}, s{S_W}, 7168")
    p(f"v_lshl_add_u32 v3, v2, 4, s{S_T0}")
    p(f"s_mul_i32 s{S_A}, s{S_DG}, {4*57344}")
    p(f"s_add_u32 s{S_A}, s{S_A}, {WS_WDF}")
    p(f"s_mul_i32 s{S_B}, s{S_TG}, {4*57344}")
    p(f"s_add_u32 s{S_B}, s{S_B}, {WS_HMF}")
    p("s_waitcnt lgkmcnt(0)")
    p(f"s_mov_b32 s56, s{P_WS}\ns_mov_b32 s57, s{P_WS+1}\ns_mov_b32 s58, {WS_SIZE}\ns_mov_b32 s59, 0x00020000")
    NSET = 5
    FR = 8
    ACC = 168
    def loads(ks):
        fr = FR + 32 * (ks % NSET)
        for j in range(4):
            p(f"s_add_u32 s{S_T0}, s{S_A}, {j*57344 + ks*1024}")
            p(f"buffer_load_dwordx4 v[{fr+4*j}:{fr+4*j+3}], v3, s[56:59], s{S_T0} offen")
            p(f"s_add_u32 s{S_T0}, s{S_B}, {j*57344 + ks*1024}")
            p(f"buffer_load_dwordx4 v[{fr+16+4*j}:{fr+16+4*j+3}], v3, s[56:59], s{S_T0} offen")
    for ks in range(NSET): loads(ks)
    issued = NSET
    for ks in range(7):
        p(f"s_waitcnt vmcnt({8*(issued-ks-1)})")
        fr = FR + 32 * (ks % NSET)
        for j in range(4):
            for t in range(4):
                d = ACC + (j * 4 + t) * 4
                p(f"v_mfma_f32_16x16x32_bf16 {vr(d,4)}, {vr(fr+4*j,4)}, {vr(fr+16+4*t,4)}, {'0' if ks == 0 else vr(d,4)}")
        if issued < 7:
            loads(issued); issued += 1
    ts(p, 1, 2)
    p("v_and_b32 v4, 15, v2")
    p("v_lshrrev_b32 v5, 4, v2")
    p(f"s_lshr_b32 s{S_T0}, s{S_W}, 1")
    p(f"s_lshl_b32 s{S_T0}, s{S_T0}, 4")
    p(f"s_lshl_b32 s{S_T1}, s{S_DG}, 6")
    p(f"s_add_u32 s60, s{S_T0}, s{S_T1}")
    p(f"s_and_b32 s{S_T0}, s{S_W}, 1")
    p(f"s_lshl_b32 s{S_T0}, s{S_T0}, 5")
    p(f"s_lshl_b32 s{S_T1}, s{S_TG}, 6")
    p(f"s_add_u32 s61, s{S_T0}, s{S_T1}")
    p("v_add_u32 v6, s61, v4")
    p("v_lshl_add_u32 v7, v5, 2, s60")
    p("v_lshlrev_b32 v8, 12, v7")
    p("v_lshl_add_u32 v8, v6, 1, v8")
    p(f"v_add_u32 v8, {WS_HT}, v8")
    for t in range(2):
        for r in range(4):
            p(f"s_mov_b32 s{S_T0}, {4096*r + 32*t}")
            p(f"buffer_load_ushort v{16+4*t+r}, v8, s[56:59], s{S_T0} offen")
    p("v_lshlrev_b32 v9, 2, v6")
    p(f"v_add_u32 v9, {WS_RS2}, v9")
    p("buffer_load_dword v24, v9, s[56:59], 0 offen")
    p("buffer_load_dword v25, v9, s[56:59], 0 offen offset:64")
    p(f"s_lshl_b32 s{S_T0}, s{S_W}, 14")
    p(f"v_lshl_add_u32 v10, v2, 4, s{S_T0}")
    for i in range(16):
        p(f"ds_write_b128 v10, v[{ACC+4*i}:{ACC+4*i+3}] offset:{1024*i}")
    p(f"s_lshl_b32 s{S_T0}, s{S_W}, 11")
    p(f"v_lshl_add_u32 v11, v2, 4, s{S_T0}")
    p("v_add_u32 v12, 65536, v11")
    p("v_mul_u32_u24 v13, 896, v6")
    p("v_lshl_add_u32 v13, v7, 1, v13")
    p("s_waitcnt lgkmcnt(0)")
    p("s_barrier")
    for t in range(2):
        for src in range(8):
            r = 32 + (t * 8 + src) * 4
            p(f"ds_read_b128 v[{r}:{r+3}], v{11 + src // 4} offset:{(src % 4) * 16384 + t * 1024}")
    for t in range(2):
        p(f"s_waitcnt lgkmcnt({8*(1-t)})")
        b = 32 + t * 32
        for st in (4, 2, 1):
            for i in range(st):
                for q in range(2):
                    x = b + 4 * i + 2 * q; y = b + 4 * (i + st) + 2 * q
                    p(f"v_pk_add_f32 v[{x}:{x+1}], v[{x}:{x+1}], v[{y}:{y+1}]")
        if t == 0: p("s_waitcnt vmcnt(0)")
        for r in range(4): p(f"v_mul_f32 v{b+r}, v{24+t}, v{b+r}")
        p(f"v_cvt_pk_bf16_f32 v{b+4}, v{b}, v{b+1}")
        p(f"v_cvt_pk_bf16_f32 v{b+5}, v{b+2}, v{b+3}")
        for r in range(4):
            src = b + 4 + r // 2
            p(f"v_lshlrev_b32 v{b+r}, 16, v{src}" if r % 2 == 0 else f"v_and_b32 v{b+r}, 0xffff0000, v{src}")
            p(f"v_lshlrev_b32 v{16+4*t+r}, 16, v{16+4*t+r}")
            p(f"v_add_f32 v{b+r}, v{b+r}, v{16+4*t+r}")
        if "--perturb" in sys.argv and t == 0:
            dl = float(sys.argv[sys.argv.index("--perturb") + 1])
            p("v_cmp_eq_u32 vcc, 0, v13")
            p(f"v_mov_b32 v14, {hx(f32(dl))}")
            p("v_cndmask_b32 v14, 0, v14, vcc")
            p(f"v_add_f32 v{b}, v{b}, v14")
        p(f"v_cvt_pk_bf16_f32 v{b+4}, v{b}, v{b+1}")
        p(f"v_cvt_pk_bf16_f32 v{b+5}, v{b+2}, v{b+3}")
        if t == 1: p(f"v_add_u32 v13, {16*896}, v13")
        p(f"global_store_dwordx2 v13, v[{b+4}:{b+5}], {sp(P_OUT)}")
    ts(p, 2, 2)
    ts_flush(p, 2, P_WS, S_W)
    p.raw(f"L_{name}_exit:")
    p("s_endpgm")

def launches(): return [("k2_kernel", 256, 512, L2_END), ("k3_kernel", 224, 512, L3_END)]
def gen():
    p = Prog(); gen_k2(p); t = p.render()
    p = Prog(); gen_k3(p); t += p.render()
    return t, kd("k2_kernel", 256, 102) + kd("k3_kernel", 256, 102)
```

```python
import sys, struct
import numpy as np
from asmgen import *

NAME = "sequential_preLN__ssm_conv_s4__glu_gated_reglu__prompt"
DIAG = "--diag" in sys.argv

WS_EPOCH = 0
WS_ST1 = 0x1000
WS_ST2 = 0x6000
WS_CS = 0xB000
WS_HT = 0x10000
WS_WDF = 0x200000
WS_HMF = 0x400000
WS_PCS = 0xB00000
WS_TS = 0xC00000
WS_SIZE = 0x1000000

def f32(x): return struct.unpack("<I", struct.pack("<f", x))[0]
def hx(x): return "0x%08x" % x
LOG2E = 1.4426950408889634
L2E_HI = float(np.float32(LOG2E)); L2E_LO = float(np.float32(LOG2E - L2E_HI))

def bf16_round_int(l):
    u = np.float32(l).view(np.uint32)
    r = ((int(u) + 0x7FFF + ((int(u) >> 16) & 1)) >> 16) << 16
    return int(np.uint32(r).view(np.float32))

HI0 = [1, 2, 3, 4, 5, 6, 7, 8, 258, 260, 262, 264, 516, 520, 772, 776]
HI1 = [1032, 1288, 1544, 1800, 0]
def kacc_addr(t):
    cands = []
    for Mt, rows in ((0, HI0), (1, HI1)):
        for row, hi in enumerate(rows):
            if t >= hi and (t - hi) % 8 == 0 and (t - hi) // 8 < 32:
                q = (t - hi) // 8
                cands.append((Mt * 2 + (q >> 4)) * 1024 + ((row >> 2) * 16 + (q & 15)) * 16 + (row & 3) * 4)
    assert cands, t
    return cands[0]
def gather_table():
    tab = []
    for x in range(2048 + 8):
        tab.append(kacc_addr(bf16_round_int(2047 - x)) if x <= 2047 else 4096)
    return tab

TPITCH = 1040
TB = 55120
L_TAB = 0
L_PX = 0
L_KACC = 2 * TB
KACC_CH = 4096 + 64
L_KE = L_KACC + 2 * KACC_CH
KCOPY = 4096 + 64 + 64
KE_CH = 2 * KCOPY
L_U = L_KE + 2 * KE_CH
U_CH = 512 + 4096
L_X = L_U + 2 * U_CH
L_K1_END = L_X + 2 * 4096
assert L_KACC % 16 == 0 and L_KE % 16 == 0 and L_U % 16 == 0 and L_X % 16 == 0
assert L_K1_END <= 163840, L_K1_END
O_OFF = 4096 + 64
assert (O_OFF // 4) % 32 == 16 and O_OFF + 4096 + 64 <= KE_CH

def cmul(p, d, a, b, conj=False, tmp=None):
    t = tmp if tmp is not None else d
    p(f"v_pk_mul_f32 {vr(t,2)}, {vr(a,2)}, {vr(b,2)} op_sel:[0,0] op_sel_hi:[1,0]")
    neg = "neg_hi" if conj else "neg_lo"
    p(f"v_pk_fma_f32 {vr(d,2)}, {vr(a,2)}, {vr(b,2)}, {vr(t,2)} op_sel:[1,1,0] op_sel_hi:[0,1,1] {neg}:[1,0,0]")

def ts(p, slot, kern, sreg=96):
    if not DIAG: return
    p(f"s_memrealtime s[{sreg}:{sreg+1}]")
    p("s_waitcnt lgkmcnt(0)")
    p(f"v_writelane_b32 v255, s{sreg}, {slot}")

def tsc(p, slot, sreg=96):
    if not DIAG: return
    p(f"s_memtime s[{sreg}:{sreg+1}]")
    p("s_waitcnt lgkmcnt(0)")
    p(f"v_writelane_b32 v255, s{sreg}, {slot}")

def ts_flush(p, kern, ws_pair, wave_sreg):
    if not DIAG: return
    lab = f"L_ts_{kern}_{len(p.items)}"
    p(f"s_lshl_b32 s96, s2, 3")
    p(f"s_add_u32 s96, s96, s{wave_sreg}")
    p(f"s_lshl_b32 s96, s96, 6")
    p(f"s_add_u32 s96, s96, {WS_TS + kern * 0x40000}")
    p(f"v_mbcnt_lo_u32_b32 v254, -1, 0")
    p(f"v_mbcnt_hi_u32_b32 v254, -1, v254")
    p(f"v_lshl_add_u32 v254, v254, 2, s96")
    p(f"s_mov_b64 exec, 0xffff")
    p(f"global_store_dword v254, v255, s[{ws_pair}:{ws_pair+1}]")
    p(f"s_mov_b64 exec, -1")

P_X, P_ARE, P_AIM, P_BRE, P_BIM, P_CRE, P_CIM, P_LDT = [16 + 2 * i for i in range(8)]
P_DSK, P_BX, P_WG, P_WU, P_WD, P_OUT, P_DBG, P_WS = [32 + 2 * i for i in range(8)]
def sp(b): return f"s[{b}:{b+1}]"

def prologue(p, name, nwg):
    p.raw(f".globl {name}\n.p2align 8\n.type {name},@function\n{name}:")
    p(f"s_cmp_ge_u32 s2, {nwg}")
    p(f"s_cbranch_scc1 L_{name}_exit")
    p("s_load_dwordx16 s[16:31], s[0:1], 0")
    p("s_load_dwordx16 s[32:47], s[0:1], 64")

def gen_k1(p):
    name = "k1_kernel"
    prologue(p, name, 256)
    p("s_getpc_b64 s[60:61]")
    p.raw("L_k1_pc0:")
    p("v_lshlrev_b32 v1, 7, v0")
    p("v_cmp_gt_u32 vcc, k1_code_end-L_k1_pc0, v1")
    p("s_and_saveexec_b64 s[62:63], vcc")
    p("s_cbranch_execz L_k1_nopf")
    p("global_load_dword v25, v1, s[60:61]")
    p.raw("L_k1_nopf:")
    p("s_mov_b64 exec, -1")
    ts(p, 0, 0)
    S_W, S_CH, S_V, S_CP, S_D, S_TAG, S_T0, S_T1, S_T2, S_LDT, S_DSK = 48, 49, 50, 51, 52, 53, 54, 55, 56, 57, 58
    p("v_lshrrev_b32 v1, 6, v0")
    p("v_and_b32 v2, 63, v0")
    p(f"v_readfirstlane_b32 s{S_W}, v1")
    p(f"s_and_b32 s{S_T0}, s2, 7")
    p(f"s_lshr_b32 s{S_T1}, s2, 3")
    p(f"s_cmp_ge_u32 s{S_T1}, 28")
    p("s_cbranch_scc1 L_k1_aux")
    p(f"s_mul_i32 s{S_CP}, s{S_T0}, 28")
    p(f"s_add_u32 s{S_CP}, s{S_CP}, s{S_T1}")
    p(f"s_lshr_b32 s{S_CH}, s{S_W}, 2")
    p(f"s_and_b32 s{S_V}, s{S_W}, 3")
    p(f"s_lshl_b32 s{S_D}, s{S_CP}, 1")
    p(f"s_add_u32 s{S_D}, s{S_D}, s{S_CH}")
    p(f"s_lshl_b32 s{S_T0}, s{S_D}, 9")
    p(f"s_lshl_b32 s{S_T1}, s{S_V}, 7")
    p(f"s_add_u32 s{S_T0}, s{S_T0}, s{S_T1}")
    p(f"v_lshl_add_u32 v3, v2, 1, s{S_T0}")
    p(f"s_lshl_b32 s{S_T1}, s{S_CP}, 2")
    p("v_mul_u32_u24 v4, 3584, v0" if "--nogather" not in sys.argv else "v_mul_u32_u24 v4, 4, v0")
    p(f"v_add_u32 v4, s{S_T1}, v4")
    p("s_add_u32 s60, s60, k1_gtab-L_k1_pc0")
    p("s_addc_u32 s61, s61, 0")
    p("v_and_b32 v5, 255, v0")
    p("v_lshlrev_b32 v5, 4, v5")
    p("s_waitcnt lgkmcnt(0)")
    VP = 8
    for i, ptr in enumerate((P_ARE, P_AIM, P_BRE, P_BIM, P_CRE, P_CIM)):
        p(f"global_load_ushort v{VP+i}, v3, {sp(ptr)}")
    ts(p, 8, 0)
    p(f"s_add_u32 s62, s{P_LDT}, s{S_T1}")
    p(f"s_addc_u32 s63, s{P_LDT+1}, 0")
    p(f"s_load_dword s{S_LDT}, s[62:63], 0")
    p(f"s_add_u32 s64, s{P_DSK}, s{S_T1}")
    p(f"s_addc_u32 s65, s{P_DSK+1}, 0")
    p(f"s_load_dword s{S_DSK}, s[64:65], 0")
    p(f"s_load_dword s{S_TAG}, {sp(P_WS)}, {WS_EPOCH}")
    VX = 16
    p(f"s_lshr_b32 s{S_T2}, s2, 3")
    p(f"s_lshl_b32 s{S_T2}, s{S_T2}, 9")
    p(f"v_add_u32 v26, s{S_T2}, v0")
    p("v_lshrrev_b32 v27, 2, v26")
    p("v_and_b32 v27, 2047, v27")
    p("v_mul_u32_u24 v27, 896, v27")
    p("v_and_b32 v26, 3, v26")
    p("v_mul_u32_u24 v26, 36, v26")
    p(f"s_and_b32 s{S_T2}, s2, 7")
    p(f"s_mul_i32 s{S_T2}, s{S_T2}, 112")
    p(f"v_add3_u32 v27, v27, v26, s{S_T2}")
    p(f"global_load_dword v25, v27, {sp(P_X)}")
    VG = 20
    p(f"global_load_dwordx4 v[{VG}:{VG+3}], v5, s[60:61]")
    p(f"global_load_ushort v{VG+4}, v5, s[60:61] offset:16")
    ts(p, 9, 0)
    p("v_mov_b32 v28, 0\nv_mov_b32 v29, 0\nv_mov_b32 v30, 0\nv_mov_b32 v31, 0")
    p("v_lshlrev_b32 v26, 4, v2")
    p("s_mov_b64 exec, 0xf")
    for ch in range(2):
        p(f"v_add_u32 v27, {L_KACC + ch*KACC_CH + 4096}, v26")
        p("ds_write_b128 v27, v[28:31]")
        for cp_off in (0, O_OFF):
            p(f"v_add_u32 v27, {L_KE + ch*KE_CH + cp_off + 4096}, v26")
            p("ds_write_b128 v27, v[28:31]")
    p("s_mov_b32 exec_lo, -1")
    p("s_mov_b32 exec_hi, 0")
    for ch in range(2):
        p(f"v_add_u32 v27, {L_U + ch*U_CH}, v26")
        p("ds_write_b128 v27, v[28:31]")
    p("s_mov_b64 exec, -1")
    p(f"s_mul_i32 s{S_T0}, s{S_CH}, {TB}")
    p(f"s_lshl_b32 s{S_T1}, s{S_V}, 8")
    p(f"s_add_u32 s{S_T0}, s{S_T0}, s{S_T1}")
    p(f"s_mov_b32 m0, s{S_T0}")
    VT = 32
    p("v_and_b32 v33, 15, v2")
    p("v_lshrrev_b32 v34, 4, v2")
    p(f"v_mul_u32_u24 v{VT}, {TPITCH}, v33")
    p(f"v_lshl_add_u32 v{VT}, v34, 8, v{VT}")
    p(f"s_mul_i32 s{S_T0}, s{S_CH}, {TB}")
    p(f"s_and_b32 s{S_T1}, s{S_V}, 1")
    p(f"s_mul_i32 s{S_T1}, s{S_T1}, {16*TPITCH}")
    p(f"s_add_u32 s{S_T1}, s{S_T1}, s{S_T0}")
    p(f"v_add_u32 v{VT+3}, s{S_T1}, v{VT}")
    p(f"s_lshr_b32 s{S_T1}, s{S_V}, 1")
    p(f"s_mul_i32 s{S_T1}, s{S_T1}, {16*TPITCH}")
    p(f"s_add_u32 s{S_T1}, s{S_T1}, s{S_T0}")
    p(f"s_add_u32 s{S_T1}, s{S_T1}, {32*TPITCH}")
    p(f"v_add_u32 v{VT}, s{S_T1}, v{VT}")
    p("s_waitcnt lgkmcnt(0)")
    ts(p, 10, 0)
    p(f"s_add_u32 s{S_TAG}, s{S_TAG}, 2")
    p(f"s_or_b32 s{S_TAG}, s{S_TAG}, 1")
    p(f"s_lshl_b32 s{S_T1}, s{S_CH}, 4")
    p(f"s_lshr_b32 s{S_LDT}, s{S_LDT}, s{S_T1}")
    p(f"s_lshl_b32 s{S_LDT}, s{S_LDT}, 16")
    p(f"s_lshr_b32 s{S_DSK}, s{S_DSK}, s{S_T1}")
    p(f"s_lshl_b32 s{S_DSK}, s{S_DSK}, 16")
    p(f"v_mov_b32 v36, s{S_LDT}")
    p(f"v_mov_b32 v37, {hx(f32(L2E_HI))}")
    p("v_mul_f32 v38, v36, v37")
    p("v_fma_f32 v39, v36, v37, -v38")
    p(f"v_fmac_f32 v39, {hx(f32(L2E_LO))}, v36")
    p("v_exp_f32 v38, v38")
    p(f"v_mul_f32 v39, {hx(f32(0.6931471805599453))}, v39")
    p("v_fma_f32 v38, v38, v39, v38")
    p("v_cvt_pk_bf16_f32 v38, v38, v38")
    p("v_lshlrev_b32 v36, 16, v38")
    ts(p, 11, 0)
    p("s_waitcnt vmcnt(3)")
    ts(p, 1, 0)
    for i in range(6): p(f"v_lshlrev_b32 v{VP+i}, 16, v{VP+i}")
    p(f"v_mul_f32 v{VP}, v36, v{VP}")
    p(f"v_mul_f32 v{VP+1}, v36, v{VP+1}")
    p(f"v_mul_f32 v{VP+2}, v36, v{VP+2}")
    p(f"v_mul_f32 v{VP+3}, v36, v{VP+3}")
    p(f"v_mul_f32 v{VP}, v37, v{VP}")
    p(f"v_mul_f32 v{VP+1}, 0.15915494, v{VP+1}")
    Z1, Z8, Z256, ZL2 = 40, 42, 44, 46
    for Z, T in ((Z8, 8.0), (Z1, 1.0), (Z256, 256.0)):
        if T == 1.0:
            p(f"v_exp_f32 v48, v{VP}")
            p(f"v_fract_f32 v49, v{VP+1}")
        else:
            p(f"v_mul_f32 v48, {hx(f32(T))}, v{VP}")
            p(f"v_mul_f32 v49, {hx(f32(T))}, v{VP+1}")
            p("v_exp_f32 v48, v48")
            p("v_fract_f32 v49, v49")
        p(f"v_cos_f32 v{Z}, v49")
        p(f"v_sin_f32 v{Z+1}, v49")
        p(f"v_mul_f32 v{Z}, v48, v{Z}")
        p(f"v_mul_f32 v{Z+1}, v48, v{Z+1}")
    H = 50
    cmul(p, H, VP + 4, VP + 2)
    p(f"v_xor_b32 v{H+1}, 0x80000000, v{H+1}")
    def put(row, z, tmp):
        p(f"v_cvt_pk_bf16_f32 v{tmp}, v{z}, v{z+1}")
        p(f"ds_write_addtid_b32 v{tmp} offset:{row*TPITCH}")
    tmpc = [0]
    def nt():
        tmpc[0] = (tmpc[0] + 1) % 8
        return 100 + tmpc[0]
    p("v_mov_b32 v99, 0x00003f80")
    p("ds_write_addtid_b32 v99 offset:0")
    put(52, H, nt())
    put(1, Z8, nt())
    cmul(p, ZL2, Z8, Z8)
    LA = [70, 72]; LB = [74, 76]
    lo_ops = []
    cur_e, cur_o = ZL2, Z8
    for q in range(2, 32):
        if q == 2:
            lo_ops.append(("put", 2, ZL2))
        elif q % 2 == 0:
            dst = LA[(q // 2) % 2]; lo_ops.append(("mul", q, dst, cur_e)); cur_e = dst
        else:
            dst = LB[(q // 2) % 2]; lo_ops.append(("mul", q, dst, cur_o)); cur_o = dst
    G = 80
    hi_ops = []
    for e in range(1, 9): hi_ops.append((32 + e - 1, H + 2 * e, H + 2 * (e - 1), Z1))
    hi_ops += [(40, G, H + 4, Z256), (41, G + 2, H + 8, Z256), (42, G + 4, H + 12, Z256), (43, G + 6, H + 16, Z256),
               (44, G + 8, G + 2, Z256), (45, G + 10, G + 6, Z256), (46, G + 12, G + 8, Z256), (47, G + 14, G + 10, Z256),
               (48, G + 16, G + 14, Z256), (49, G, G + 16, Z256), (50, G + 2, G, Z256), (51, G + 4, G + 2, Z256)]
    li = hi_i = 0
    while li < len(lo_ops) or hi_i < len(hi_ops):
        for _ in range(3 if hi_i % 2 else 1):
            if li < len(lo_ops):
                o = lo_ops[li]; li += 1
                if o[0] == "put": put(o[1], o[2], nt())
                else:
                    cmul(p, o[2], o[3], ZL2); put(o[1], o[2], nt())
        if hi_i < len(hi_ops):
            row, dst, src, z = hi_ops[hi_i]; hi_i += 1
            cmul(p, dst, src, z, conj=True); put(row, dst, nt())
            if hi_i in (1, 5, 9, 13):
                j = (hi_i - 1) // 4
                p(f"global_load_dword v{VX+j}, v4, {sp(P_X)} offset:{896*j}")
    ts(p, 2, 0)
    VS = 108
    p("v_lshlrev_b32 v6, 5, v0")
    p(f"v_add_u32 v6, {WS_ST1}, v6")
    p(f"global_load_dwordx4 v[{VS}:{VS+3}], v6, {sp(P_WS)} sc1")
    p(f"global_load_dwordx4 v[{VS+4}:{VS+7}], v6, {sp(P_WS)} offset:16 sc1")
    p("s_waitcnt lgkmcnt(0)")
    p("s_barrier")
    F = 124
    KA = 120
    for s_ in range(16):
        p(f"ds_read_b128 v[{F+8*s_}:{F+8*s_+3}], v{VT} offset:{16*s_}")
        p(f"ds_read_b128 v[{F+8*s_+4}:{F+8*s_+7}], v{VT+3} offset:{16*s_}")
    for s_ in range(16):
        p(f"s_waitcnt lgkmcnt({min(15, 2*(15-s_))})")
        c = "0" if s_ == 0 else vr(KA, 4)
        p(f"v_mfma_f32_16x16x32_bf16 {vr(KA,4)}, {vr(F+8*s_,4)}, {vr(F+8*s_+4,4)}, {c}")
    p(f"s_mul_i32 s{S_T0}, s{S_CH}, {KACC_CH}")
    p(f"s_add_u32 s{S_T0}, s{S_T0}, {L_KACC}")
    p(f"v_add_u32 v7, s{S_T0}, v5")
    p(f"ds_write_b128 v7, v[{KA}:{KA+3}]")
    p("s_waitcnt vmcnt(2)")
    ts(p, 12, 0)
    p.raw("L_k1_poll:")
    p("s_waitcnt vmcnt(0)")
    p(f"v_cmp_ne_u32 vcc, s{S_TAG}, v{VS+1}")
    p(f"v_cmp_ne_u32 s[66:67], s{S_TAG}, v{VS+3}")
    p("s_or_b64 vcc, vcc, s[66:67]")
    p(f"v_cmp_ne_u32 s[66:67], s{S_TAG}, v{VS+5}")
    p("s_or_b64 vcc, vcc, s[66:67]")
    p(f"v_cmp_ne_u32 s[66:67], s{S_TAG}, v{VS+7}")
    p("s_or_b64 vcc, vcc, s[66:67]")
    p("s_cbranch_vccz L_k1_polldone")
    p("v_mov_b32 v116, 0")
    p(f"global_load_dword v117, v116, {sp(P_DBG)} sc1")
    p(f"global_load_dwordx4 v[{VS}:{VS+3}], v6, {sp(P_WS)} sc1")
    p(f"global_load_dwordx4 v[{VS+4}:{VS+7}], v6, {sp(P_WS)} offset:16 sc1")
    p("s_waitcnt vmcnt(2)")
    p(f"v_readfirstlane_b32 s{S_T1}, v117")
    p(f"s_cmp_eq_u32 s{S_T1}, 0")
    p(f"s_cselect_b32 s{S_TAG}, s{S_TAG}, s{S_T1}")
    p("s_branch L_k1_poll")
    p.raw("L_k1_polldone:")
    ts(p, 3, 0)
    U0, U1 = 116, 100
    for j in range(4):
        g = VS + 2 * j
        p(f"v_lshlrev_b32 v124, 16, v{g}")
        p(f"v_and_b32 v125, 0xffff0000, v{g}")
        p("v_rcp_f32 v125, v125")
        p(f"v_lshlrev_b32 v126, 16, v{VX+j}")
        p(f"v_and_b32 v127, 0xffff0000, v{VX+j}")
        p("v_sub_f32 v126, v126, v124")
        p("v_sub_f32 v127, v127, v124")
        p("v_cvt_pk_bf16_f32 v126, v126, v127")
        p("v_and_b32 v127, 0xffff0000, v126")
        p("v_lshlrev_b32 v126, 16, v126")
        p(f"v_mul_f32 v{U0+j}, v126, v125")
        p(f"v_mul_f32 v{U1+j}, v127, v125")
    p(f"v_cvt_pk_bf16_f32 v{U0}, v{U0}, v{U0+1}")
    p(f"v_cvt_pk_bf16_f32 v{U0+1}, v{U0+2}, v{U0+3}")
    p(f"v_cvt_pk_bf16_f32 v{U1}, v{U1}, v{U1+1}")
    p(f"v_cvt_pk_bf16_f32 v{U1+1}, v{U1+2}, v{U1+3}")
    p("v_lshlrev_b32 v26, 3, v0")
    p(f"v_add_u32 v27, {L_U + 512}, v26")
    p(f"ds_write_b64 v27, v[{U0}:{U0+1}]")
    p(f"ds_write_b64 v27, v[{U1}:{U1+1}] offset:{U_CH}")
    p("s_mov_b32 s66, 0x05040100")
    p("s_mov_b32 s67, 0x07060302")
    p(f"v_perm_b32 v124, v{VX+1}, v{VX}, s66")
    p(f"v_perm_b32 v125, v{VX+3}, v{VX+2}, s66")
    p(f"v_perm_b32 v126, v{VX+1}, v{VX}, s67")
    p(f"v_perm_b32 v127, v{VX+3}, v{VX+2}, s67")
    p(f"ds_write_b64 v27, v[124:125] offset:{L_X - L_U - 512}")
    p(f"ds_write_b64 v27, v[126:127] offset:{L_X - L_U - 512 + 4096}")
    GA = 128
    for i in range(4):
        p(f"v_and_b32 v{GA+2*i}, 0xffff, v{VG+i}")
        p(f"v_lshrrev_b32 v{GA+2*i+1}, 16, v{VG+i}")
    p(f"v_mov_b32 v{GA+8}, v{VG+4}")
    for i in range(9): p(f"v_add_u32 v{GA+i}, s{S_T0}, v{GA+i}")
    p("s_waitcnt lgkmcnt(0)")
    p("s_barrier")
    ts(p, 4, 0)
    p("s_cmp_lg_u32 s2, 0")
    p("s_cbranch_scc1 L_k1_nobump")
    p(f"s_cmp_lg_u32 s{S_W}, 0")
    p("s_cbranch_scc1 L_k1_nobump")
    p("v_mov_b32 v116, 0")
    p(f"v_mov_b32 v117, s{S_TAG}")
    p(f"global_store_dword v116, v117, {sp(P_DBG)} sc1")
    p("s_waitcnt vmcnt(0)")
    p(f"global_store_dword v116, v117, {sp(P_WS)} offset:{WS_EPOCH} sc1")
    p.raw("L_k1_nobump:")
    GV = 140
    for i in range(9): p(f"ds_read_b32 v{GV+i}, v{GA+i}")
    p(f"s_mul_i32 s{S_T0}, s{S_CH}, {KE_CH}")
    p(f"s_add_u32 s{S_T0}, s{S_T0}, {L_KE}")
    p(f"v_add_u32 v27, s{S_T0}, v5")
    p("s_waitcnt lgkmcnt(0)")
    for i in range(4):
        p(f"v_cvt_pk_bf16_f32 v{152+i}, v{GV+2*i}, v{GV+2*i+1}")
        p(f"v_cvt_pk_bf16_f32 v{156+i}, v{GV+2*i+1}, v{GV+2*i+2}")
    p("ds_write_b128 v27, v[152:155]")
    p(f"ds_write_b128 v27, v[156:159] offset:{O_OFF}")
    VA = 36
    p("v_lshlrev_b32 v35, 3, v34")
    p("v_sub_u32 v35, v35, v33")
    p("v_add_u32 v35, 2031, v35")
    p("v_and_b32 v35, -2, v35")
    p("v_lshlrev_b32 v35, 1, v35")
    p("v_and_b32 v26, 1, v33")
    p("v_sub_u32 v26, 1, v26")
    p(f"v_mul_u32_u24 v26, {O_OFF}, v26")
    p(f"s_lshl_b32 s{S_T1}, s{S_V}, 7")
    p(f"s_sub_u32 s{S_T0}, s{S_T0}, s{S_T1}")
    p(f"s_sub_u32 s{S_T0}, s{S_T0}, {64 + 512}")
    p(f"v_add3_u32 v{VA}, v35, v26, s{S_T0}")
    for k in range(1, 4): p(f"v_subrev_u32 v{VA+k}, {1024*k}, v{VA}")
    VB = 40
    p(f"s_mul_i32 s{S_T0}, s{S_CH}, {U_CH}")
    p(f"s_add_u32 s{S_T0}, s{S_T0}, {L_U + 512 - 32 - 64}")
    p(f"s_sub_u32 s{S_T0}, s{S_T0}, s{S_T1}")
    p("v_lshlrev_b32 v26, 5, v33")
    p("v_lshl_add_u32 v26, v34, 4, v26")
    p(f"v_add_u32 v{VB}, s{S_T0}, v26")
    p("s_waitcnt lgkmcnt(0)")
    p("s_barrier")
    ts(p, 5, 0)
    tsc(p, 14)
    FA = [64, 128]; FB = [96, 160]
    ACC = 192
    def ld(rr, k):
        a = FA[rr] + 4 * k
        o = (1 - (k & 1)) * 128 + (1 - rr) * 16
        b = FB[rr] + 4 * k
        return [f"ds_read2_b32 v[{a}:{a+1}], v{VA + (k >> 1)} offset0:{o} offset1:{o+1}",
                f"ds_read2_b32 v[{a+2}:{a+3}], v{VA + (k >> 1)} offset0:{o+2} offset1:{o+3}",
                f"ds_read_b128 v[{b}:{b+3}], v{VB} offset:{512*k + (1-rr)*64}"]
    seq = [(rr, k) for rr in range(2) for k in range(8)]
    AHEAD = 5
    for i in range(AHEAD):
        for x in ld(*seq[i]): p(x)
    pend = []
    for j in range(AHEAD, len(seq)): pend += ld(*seq[j])
    issued = 3 * AHEAD
    first = set()
    for i, (rr, k) in enumerate(seq):
        needn = 3 * (i + 1)
        while issued < needn + 3 and pend:
            p(pend.pop(0)); issued += 1
        p(f"s_waitcnt lgkmcnt({min(15, issued - needn)})")
        pairs = [(k, q) for q in range(k + 1) if k + q <= 7] + [(m, k) for m in range(k) if m + k <= 7]
        for (m, q) in pairs:
            n = m + q
            d = ACC + 4 * n
            c = vr(d, 4) if n in first else "0"
            first.add(n)
            p(f"v_mfma_f32_16x16x32_bf16 {vr(d,4)}, {vr(FA[rr]+4*m,4)}, {vr(FB[rr]+4*q,4)}, {c}")
            if pend and issued - needn < 14:
                p(pend.pop(0)); issued += 1
    ts(p, 6, 0)
    tsc(p, 15)
    p(f"s_lshl_b32 s{S_T0}, s{S_W}, 13")
    p(f"v_lshl_add_u32 v26, v2, 4, s{S_T0}")
    for n in range(8):
        p(f"ds_write_b128 v26, v[{ACC+4*n}:{ACC+4*n+3}] offset:{L_PX + n*1024}")
    p(f"s_lshl_b32 s{S_T0}, s{S_CH}, 15")
    p(f"s_lshl_b32 s{S_T1}, s{S_V}, 11")
    p(f"s_add_u32 s{S_T0}, s{S_T0}, s{S_T1}")
    p(f"v_lshl_add_u32 v27, v2, 4, s{S_T0}")
    p("v_lshlrev_b32 v28, 5, v33")
    p("v_lshl_add_u32 v28, v34, 3, v28")
    p(f"s_lshl_b32 s{S_T1}, s{S_V}, 10")
    p(f"v_add_u32 v28, s{S_T1}, v28")
    p(f"s_mul_i32 s{S_T0}, s{S_CH}, {U_CH}")
    p(f"s_add_u32 s{S_T0}, s{S_T0}, {L_U + 512}")
    p(f"v_add_u32 v29, s{S_T0}, v28")
    p(f"s_lshl_b32 s{S_T0}, s{S_CH}, 12")
    p(f"s_add_u32 s{S_T0}, s{S_T0}, {L_X}")
    p(f"v_add_u32 v30, s{S_T0}, v28")
    p("ds_read_b64 v[44:45], v29")
    p("ds_read_b64 v[46:47], v29 offset:512")
    p("ds_read_b64 v[48:49], v30")
    p("ds_read_b64 v[50:51], v30 offset:512")
    p(f"s_lshl_b32 s{S_T0}, s{S_D}, 12")
    p(f"s_add_u32 s{S_T0}, s{S_T0}, {WS_HT}")
    p(f"v_add_u32 v28, s{S_T0}, v28")
    p("s_waitcnt lgkmcnt(0)")
    p("s_barrier")
    for t in range(2):
        for src in range(4):
            r = 64 + (t * 4 + src) * 4
            p(f"ds_read_b128 v[{r}:{r+3}], v27 offset:{L_PX + src*8192 + t*1024}")
    for t in range(2):
        p(f"s_waitcnt lgkmcnt({4*(1-t)})")
        b = 64 + t * 16
        p(f"v_pk_add_f32 v[{b}:{b+1}], v[{b}:{b+1}], v[{b+4}:{b+5}]")
        p(f"v_pk_add_f32 v[{b+2}:{b+3}], v[{b+2}:{b+3}], v[{b+6}:{b+7}]")
        p(f"v_pk_add_f32 v[{b+8}:{b+9}], v[{b+8}:{b+9}], v[{b+12}:{b+13}]")
        p(f"v_pk_add_f32 v[{b+10}:{b+11}], v[{b+10}:{b+11}], v[{b+14}:{b+15}]")
        p(f"v_pk_add_f32 v[{b}:{b+1}], v[{b}:{b+1}], v[{b+8}:{b+9}]")
        p(f"v_pk_add_f32 v[{b+2}:{b+3}], v[{b+2}:{b+3}], v[{b+10}:{b+11}]")
        for pr in range(2):
            y0, y1 = b + 2 * pr, b + 2 * pr + 1
            uu = 44 + 2 * t + pr; xx = 48 + 2 * t + pr
            p(f"v_cvt_pk_bf16_f32 v100, v{y0}, v{y1}")
            p(f"v_lshlrev_b32 v101, 16, v{uu}")
            p(f"v_and_b32 v102, 0xffff0000, v{uu}")
            p(f"v_mul_f32 v101, s{S_DSK}, v101")
            p(f"v_mul_f32 v102, s{S_DSK}, v102")
            p("v_cvt_pk_bf16_f32 v101, v101, v102")
            p("v_lshlrev_b32 v102, 16, v100")
            p("v_and_b32 v100, 0xffff0000, v100")
            p("v_lshlrev_b32 v103, 16, v101")
            p("v_and_b32 v101, 0xffff0000, v101")
            p("v_add_f32 v102, v102, v103")
            p("v_add_f32 v100, v100, v101")
            p("v_cvt_pk_bf16_f32 v100, v102, v100")
            p(f"v_lshlrev_b32 v102, 16, v{xx}")
            p(f"v_and_b32 v103, 0xffff0000, v{xx}")
            p("v_lshlrev_b32 v101, 16, v100")
            p("v_and_b32 v100, 0xffff0000, v100")
            p("v_add_f32 v102, v102, v101")
            p("v_add_f32 v103, v103, v100")
            p(f"v_cvt_pk_bf16_f32 v{104+2*t+pr}, v102, v103")
        p(f"global_store_dwordx2 v28, v[{104+2*t}:{105+2*t}], {sp(P_WS)} offset:{512*t}")
    ts(p, 7, 0)
    ts_flush(p, 0, P_WS, S_W)
    p("s_endpgm")

    p.raw("L_k1_aux:")
    S_A = 51
    p(f"s_lshl_b32 s{S_A}, s{S_T0}, 2")
    p(f"s_add_u32 s{S_A}, s{S_A}, s{S_T1}")
    p(f"s_sub_u32 s{S_A}, s{S_A}, 28")
    p(f"s_lshl_b32 s{S_T0}, s{S_A}, 6")
    p(f"s_lshl_b32 s{S_T1}, s{S_W}, 3")
    p(f"s_add_u32 s{S_T0}, s{S_T0}, s{S_T1}")
    p("v_lshrrev_b32 v3, 3, v2")
    p(f"v_add_u32 v3, s{S_T0}, v3")
    p("v_mul_u32_u24 v4, 896, v3")
    p("v_and_b32 v5, 7, v2")
    p("v_lshl_add_u32 v4, v5, 4, v4")
    p("s_waitcnt lgkmcnt(0)")
    for i in range(7):
        p(f"global_load_dwordx4 v[{8+4*i}:{11+4*i}], v4, {sp(P_X)} offset:{128*i}")
    p(f"s_load_dword s{S_TAG}, {sp(P_WS)}, {WS_EPOCH}")
    p("s_waitcnt vmcnt(0) lgkmcnt(0)")
    p(f"s_add_u32 s{S_TAG}, s{S_TAG}, 2")
    p(f"s_or_b32 s{S_TAG}, s{S_TAG}, 1")
    for i in range(28):
        p(f"v_lshlrev_b32 v{40+2*i}, 16, v{8+i}")
        p(f"v_and_b32 v{41+2*i}, 0xffff0000, v{8+i}")
    p("v_pk_add_f32 v[8:9], v[40:41], v[42:43]")
    p("v_pk_add_f32 v[10:11], v[44:45], v[46:47]")
    for i in range(4, 28, 2):
        p(f"v_pk_add_f32 v[8:9], v[8:9], v[{40+2*i}:{41+2*i}]")
        p(f"v_pk_add_f32 v[10:11], v[10:11], v[{42+2*i}:{43+2*i}]")
    p("v_pk_add_f32 v[8:9], v[8:9], v[10:11]")
    p("v_add_f32 v8, v8, v9")
    def red8(r):
        p(f"v_add_f32_dpp v{r}, v{r}, v{r} quad_perm:[1,0,3,2] row_mask:0xf bank_mask:0xf")
        p(f"v_add_f32_dpp v{r}, v{r}, v{r} quad_perm:[2,3,0,1] row_mask:0xf bank_mask:0xf")
        p(f"v_add_f32_dpp v{r}, v{r}, v{r} row_half_mirror row_mask:0xf bank_mask:0xf")
    red8(8)
    p(f"v_mul_f32 v8, {hx(f32(1.0/448))}, v8")
    p("v_mov_b32 v9, v8")
    p("v_mov_b32 v12, 0\nv_mov_b32 v13, 0\nv_mov_b32 v14, 0\nv_mov_b32 v15, 0")
    for i in range(28):
        a = 40 + 2 * i; acc = 12 + 2 * (i & 1)
        p(f"v_pk_add_f32 v[{a}:{a+1}], v[{a}:{a+1}], v[8:9] neg_lo:[0,1] neg_hi:[0,1]")
        p(f"v_pk_fma_f32 v[{acc}:{acc+1}], v[{a}:{a+1}], v[{a}:{a+1}], v[{acc}:{acc+1}]")
    p("v_pk_add_f32 v[12:13], v[12:13], v[14:15]")
    p("v_add_f32 v12, v12, v13")
    red8(12)
    p(f"v_mul_f32 v12, {hx(f32(1.0/448))}, v12")
    p("v_cvt_pk_bf16_f32 v12, v12, v12")
    p("v_lshlrev_b32 v12, 16, v12")
    p(f"v_add_f32 v12, {hx(f32(1e-5))}, v12")
    p("v_cvt_pk_bf16_f32 v12, v12, v12")
    p("v_lshlrev_b32 v12, 16, v12")
    p("v_sqrt_f32 v12, v12")
    p("v_cvt_pk_bf16_f32 v12, v8, v12")
    p(f"v_mov_b32 v13, s{S_TAG}")
    p("v_lshlrev_b32 v3, 3, v3")
    p(f"v_add_u32 v3, {WS_ST1}, v3")
    p("s_mov_b32 exec_lo, 0x01010101")
    p("s_mov_b32 exec_hi, 0x01010101")
    p(f"global_store_dwordx2 v3, v[12:13], {sp(P_WS)} sc1")
    p("s_mov_b64 exec, -1")
    ts(p, 1, 0)
    p("s_barrier")
    assert all(((t * 1171) >> 16) == t // 56 for t in range(512))
    p("v_mul_u32_u24 v6, 1171, v0")
    p("v_lshrrev_b32 v6, 16, v6")
    p("v_mul_u32_u24 v7, 56, v6")
    p("v_sub_u32 v7, v0, v7")
    p("v_min_u32 v6, 7, v6")
    p("v_cmp_lt_u32 vcc, 27, v7")
    p("v_subrev_u32 v8, 28, v7")
    p("v_cndmask_b32 v8, v7, v8, vcc")
    p(f"v_mov_b32 v10, s{P_WG}")
    p(f"v_mov_b32 v11, s{P_WG+1}")
    p(f"v_mov_b32 v12, s{P_WU}")
    p(f"v_mov_b32 v13, s{P_WU+1}")
    p("v_cndmask_b32 v10, v10, v12, vcc")
    p("v_cndmask_b32 v11, v11, v13, vcc")
    p(f"v_mov_b32 v14, 7168")
    p("v_cndmask_b32 v14, 0, v14, vcc")
    p(f"s_and_b32 s{S_T0}, s{S_A}, 3")
    p(f"s_mul_i32 s{S_T1}, s{S_T0}, {112*3584}")
    p(f"s_lshr_b32 s{S_T2}, s{S_A}, 2")
    p(f"s_mul_i32 s66, s{S_T2}, 448")
    p(f"s_add_u32 s{S_T1}, s{S_T1}, s66")
    p(f"v_mul_u32_u24 v9, {14*3584}, v6")
    p("v_lshl_add_u32 v9, v8, 4, v9")
    p(f"v_add_u32 v9, s{S_T1}, v9")
    p("v_add_co_u32 v10, vcc, v10, v9")
    p("v_addc_co_u32 v11, vcc, 0, v11, vcc")
    for i in range(14):
        p(f"global_load_dwordx4 v[{104+4*i}:{107+4*i}], v[10:11], off")
        if i < 13:
            p("v_add_co_u32 v10, vcc, 3584, v10")
            p("v_addc_co_u32 v11, vcc, 0, v11, vcc")
    p(f"s_lshl_b32 s{S_T0}, s{S_T0}, 3")
    p(f"v_add_u32 v6, s{S_T0}, v6")
    p("v_mul_u32_u24 v6, 14336, v6")
    p("v_lshl_add_u32 v6, v8, 5, v6")
    p(f"s_mul_i32 s66, s{S_T2}, 896")
    p(f"s_add_u32 s66, s66, {WS_PCS}")
    p("v_add3_u32 v6, v6, v14, s66")
    for i in range(14):
        p(f"s_waitcnt vmcnt({13-i})")
        for k in range(4):
            d = 16 if i == 0 else 24
            p(f"v_lshlrev_b32 v{d+2*k}, 16, v{104+4*i+k}")
            p(f"v_and_b32 v{d+1+2*k}, 0xffff0000, v{104+4*i+k}")
            if i: p(f"v_pk_add_f32 v[{16+2*k}:{17+2*k}], v[{16+2*k}:{17+2*k}], v[{24+2*k}:{25+2*k}]")
    p("v_cmp_gt_u32 vcc, 448, v0")
    p("s_and_saveexec_b64 s[66:67], vcc")
    p("s_cbranch_execz L_k1_auxdone")
    p(f"global_store_dwordx4 v6, v[16:19], {sp(P_WS)}")
    p(f"global_store_dwordx4 v6, v[20:23], {sp(P_WS)} offset:16")
    p.raw("L_k1_auxdone:")
    p("s_mov_b64 exec, -1")
    ts(p, 7, 0)
    ts_flush(p, 0, P_WS, S_W)
    p.raw(f"L_{name}_exit:")
    p("s_endpgm")
    tab = gather_table()
    p.raw(".p2align 4\n.type k1_gtab,@object\nk1_gtab:")
    for i in range(0, len(tab), 8):
        p.raw(".short " + ", ".join(str(v) for v in tab[i:i+8]))
    p.raw(f".size k1_gtab, {2*len(tab)}")
    p.raw("k1_code_end:")

def main():
    hdr = open(f"cdna_kernels/{NAME}.s.ref").read().split("; Override launch")[0]
    launches = [("k1_kernel", 256, 512, L_K1_END)]
    try:
        import gen23
        launches += gen23.launches()
    except ImportError:
        gen23 = None
    extra = int(sys.argv[sys.argv.index("--extra") + 1]) if "--extra" in sys.argv else 0
    launches += [("e_kernel", 256, 64, 0)] * extra
    out = hdr
    for k, g, b, l in launches:
        out += f"; @launch kernel={k} grid=({g},1,1) block=({b},1,1) lds={l}\n"
    out += '.amdgcn_target "amdgcn-amd-amdhsa--gfx950"\n.text\n'
    p = Prog(); gen_k1(p); out += p.render()
    kds = kd("k1_kernel", 256, 102)
    if gen23:
        t, k = gen23.gen(); out += t; kds += k
    if extra:
        out += ".globl e_kernel\n.p2align 8\n.type e_kernel,@function\ne_kernel:\n    s_endpgm\n"
        kds += kd("e_kernel", 8, 8)
    out += '.section .rodata,"a"\n' + kds
    dst = sys.argv[1] if len(sys.argv) > 1 and not sys.argv[1].startswith("--") else f"cdna_kernels/{NAME}.s"
    open(dst, "w").write(out)
    print("wrote", dst, len(out), "bytes; K1 LDS", L_K1_END)

if __name__ == "__main__":
    main()
```

```python
import sys
from asmgen import *
import gen as G
from gen import *

NST = 6
STAGES = "--stages" in sys.argv
if STAGES:
    def ts(p, slot, kern, sreg=96): pass
STG = 16384 + 8192
WPOS = [2 * STG + 4096 * i for i in range(18)] + [5 * STG + 4096 * i for i in range(6)] + [4096 * i for i in range(4)]
L2_CS = NST * STG
L2_ST = L2_CS + 512
L2_END = L2_ST + 2048
assert L2_END <= 163840

def gen_k2(p):
    name = "k2_kernel"
    prologue(p, name, 256)
    S_W, S_FS, S_RB, S_T0, S_T1, S_T2, S_LV, S_TAG, S_A, S_B = 48, 49, 50, 51, 52, 53, 54, 55, 72, 73
    p("v_lshrrev_b32 v1, 6, v0")
    p("v_and_b32 v2, 63, v0")
    p(f"v_readfirstlane_b32 s{S_W}, v1")
    p(f"s_and_b32 s{S_RB}, s2, 7")
    p(f"s_lshr_b32 s{S_FS}, s2, 3")
    p("s_waitcnt lgkmcnt(0)")
    p(f"s_load_dword s{S_TAG}, {sp(P_WS)}, {WS_EPOCH}")
    for base, ptr, n in ((56, P_WS, WS_SIZE), (60, P_WG, 448 * 3584), (64, P_WU, 448 * 3584)):
        p(f"s_mov_b32 s{base}, s{ptr}\ns_mov_b32 s{base+1}, s{ptr+1}\ns_mov_b32 s{base+2}, {n}\ns_mov_b32 s{base+3}, 0x00020000")
    ts(p, 0, 1)
    p(f"s_cmp_ge_u32 s{S_FS}, 28")
    p("s_cbranch_scc1 L_k2_aux")
    p(f"s_lshr_b32 s{S_T0}, s{S_FS}, 2")
    p(f"s_mul_i32 s{S_A}, s{S_T0}, {4*57344}")
    p(f"s_add_u32 s{S_A}, s{S_A}, {WS_WDF}")
    p(f"s_and_b32 s{S_T0}, s{S_FS}, 3")
    p(f"s_lshl_b32 s{S_T1}, s{S_RB}, 2")
    p(f"s_add_u32 s{S_T0}, s{S_T0}, s{S_T1}")
    p(f"s_mul_i32 s{S_B}, s{S_T0}, {4*57344}")
    p(f"s_add_u32 s{S_B}, s{S_B}, {WS_HMF}")
    p(f"s_mul_i32 s{S_T0}, s{S_W}, 7168")
    p(f"v_lshl_add_u32 v3, v2, 4, s{S_T0}")
    WD = 8
    def wd_loads(lo=0, hi=28):
        for ks in range(7):
            for j in range(4):
                if not lo <= ks * 4 + j < hi: continue
                r = WD + (ks * 4 + j) * 4
                p(f"s_add_u32 s{S_T0}, s{S_A}, {j*57344 + ks*1024}")
                p(f"buffer_load_dwordx4 v[{r}:{r+3}], v3, s[56:59], s{S_T0} offen")
    p(f"s_cmp_ge_u32 s{S_W}, 4")
    p("s_cbranch_scc1 L_k2_load")
    FR = [8, 56]
    AH = 104
    AW = 116
    ACC = 128
    p("v_lshrrev_b32 v6, 2, v2")
    p("v_and_b32 v5, 3, v2")
    p("v_and_b32 v7, 7, v6")
    for t in range(4):
        p(f"s_lshl_b32 s{S_T0}, s{S_W}, 2")
        p(f"s_add_u32 s{S_T0}, s{S_T0}, {t}")
        p(f"v_xor_b32 v4, s{S_T0}, v7")
        p("v_lshlrev_b32 v4, 5, v4")
        p("v_lshl_add_u32 v4, v6, 9, v4")
        p(f"v_lshl_add_u32 v{AH+t}, v5, 3, v4")
        for b in (1, 2): p(f"v_add_u32 v{AH+4*b+t}, {2*STG*b}, v{AH+t}")
    p("v_bfe_u32 v7, v6, 1, 2")
    for j in range(4):
        p(f"v_xor_b32 v4, {j}, v7")
        p("v_lshlrev_b32 v4, 5, v4")
        p("v_lshl_add_u32 v4, v6, 7, v4")
        p("v_lshl_add_u32 v4, v5, 3, v4")
        p(f"v_add_u32 v{AW+j}, 16384, v4")
        for b in (1, 2): p(f"v_add_u32 v{AW+4*b+j}, {2*STG*b}, v{AW+j}")
    def reads(s):
        st = s % NST; b = st // 2; o = (st % 2) * STG
        fr = FR[s & 1]
        out = []
        for t in range(4):
            r = fr + 32 + 4 * t
            out.append(f"ds_read_b64_tr_b16 v[{r}:{r+1}], v{AH+4*b+t} offset:{o}")
            out.append(f"ds_read_b64_tr_b16 v[{r+2}:{r+3}], v{AH+4*b+t} offset:{o+8192}")
        for j in range(8):
            r = fr + 4 * j
            oo = o + (j >> 2) * 4096
            out.append(f"ds_read_b64_tr_b16 v[{r}:{r+1}], v{AW+4*b+(j&3)} offset:{oo}")
            out.append(f"ds_read_b64_tr_b16 v[{r+2}:{r+3}], v{AW+4*b+(j&3)} offset:{oo+2048}")
        return out
    p("s_barrier")
    if STAGES: tsc(p, 0)
    ts(p, 1, 1)
    if not STAGES: tsc(p, 12)
    for x in reads(0): p(x)
    p("s_waitcnt lgkmcnt(0)")
    for s in range(14):
        pend = []
        p("s_barrier")
        if STAGES: tsc(p, s + 1)
        if s < 13: pend = reads(s + 1)
        else:
            p("v_lshrrev_b32 v4, 4, v2")
            p("v_lshlrev_b32 v4, 4, v4")
            p(f"v_add_u32 v4, {L2_CS}, v4")
            p("v_and_b32 v5, 15, v2")
            p(f"s_lshl_b32 s{S_T0}, s{S_W}, 9")
            p(f"s_add_u32 s{S_T0}, s{S_T0}, {L2_ST}")
            p(f"v_lshl_add_u32 v5, v5, 3, s{S_T0}")
            pend = [f"ds_read_b128 v[{8+4*j}:{11+4*j}], v4 offset:{64*j}" for j in range(8)]
            pend += [f"ds_read_b64 v[{40+2*t}:{41+2*t}], v5 offset:{128*t}" for t in range(4)]
        fr = FR[s & 1]
        order = [(j, t) for j in range(8) for t in range(4)]
        if s == 13: order = [(j, t) for t in range(4) for J in range(2) for j in (2 * J, 2 * J + 1, 4 + 2 * J, 5 + 2 * J)]
        for (j, t) in order:
            d = ACC + (j * 4 + t) * 4
            p(f"v_mfma_f32_16x16x32_bf16 {vr(d,4)}, {vr(fr+4*j,4)}, {vr(fr+32+4*t,4)}, {'0' if s == 0 else vr(d,4)}")
            if pend: p(pend.pop(0))
        p("s_waitcnt lgkmcnt(0)")
    ts(p, 2, 1)
    if not STAGES: tsc(p, 13)
    p(f"s_lshl_b32 s{S_T0}, s{S_RB}, 4")
    p(f"s_lshl_b32 s{S_T1}, s{S_W}, 2")
    p(f"s_add_u32 s{S_T0}, s{S_T0}, s{S_T1}")
    p(f"s_mul_i32 s{S_T0}, s{S_T0}, {56*1024}")
    p(f"s_lshl_b32 s{S_T1}, s{S_FS}, 11")
    p(f"s_add_u32 s{S_T0}, s{S_T0}, s{S_T1}")
    p(f"s_add_u32 s{S_T0}, s{S_T0}, {WS_HMF}")
    p("v_lshlrev_b32 v4, 4, v2")
    for t in range(4):
        for J in range(2):
            o = 48 + 4 * ((t * 2 + J) % 4)
            for jj in range(2):
                j = 2 * J + jj
                g = ACC + (j * 4 + t) * 4; u = ACC + ((4 + j) * 4 + t) * 4
                for q in range(2):
                    p(f"v_pk_fma_f32 v[{g+2*q}:{g+2*q+1}], v[{8+4*j+2*q}:{8+4*j+2*q+1}], v[{40+2*t}:{41+2*t}], v[{g+2*q}:{g+2*q+1}] op_sel:[0,0,0] op_sel_hi:[1,0,1]")
                    p(f"v_pk_fma_f32 v[{u+2*q}:{u+2*q+1}], v[{24+4*j+2*q}:{24+4*j+2*q+1}], v[{40+2*t}:{41+2*t}], v[{u+2*q}:{u+2*q+1}] op_sel:[0,0,0] op_sel_hi:[1,0,1]")
            for jj in range(2):
                g = ACC + ((2 * J + jj) * 4 + t) * 4
                for r in range(4): p(f"v_max_f32 v{g+r}, 0, v{g+r}")
            for jj in range(2):
                j = 2 * J + jj
                g = ACC + (j * 4 + t) * 4; u = ACC + ((4 + j) * 4 + t) * 4
                for q in range(2):
                    p(f"v_pk_mul_f32 v[{g+2*q}:{g+2*q+1}], v[{g+2*q}:{g+2*q+1}], v[{u+2*q}:{u+2*q+1}]")
            for jj in range(2):
                g = ACC + ((2 * J + jj) * 4 + t) * 4
                p(f"v_cvt_pk_bf16_f32 v{o+2*jj}, v{g}, v{g+1}")
                p(f"v_cvt_pk_bf16_f32 v{o+2*jj+1}, v{g+2}, v{g+3}")
            p(f"s_add_u32 s{S_T1}, s{S_T0}, {t*56*1024 + J*1024}")
            p(f"buffer_store_dwordx4 v[{o}:{o+3}], v4, s[56:59], s{S_T1} offen sc1")
    ts(p, 3, 1)
    p("s_waitcnt vmcnt(0)")
    p(f"s_lshl_b32 s{S_T0}, s{S_W}, 10")
    p(f"v_lshl_add_u32 v4, v2, 4, s{S_T0}")
    p("v_add_u32 v5, 65536, v4")
    p("v_add_u32 v6, 131072, v4")
    p("s_barrier")
    for i in range(28):
        p(f"ds_read_b128 v[{WD+4*i}:{WD+4*i+3}], v{4 + WPOS[i] // 65536} offset:{WPOS[i] % 65536}")
    p("s_branch L_k2_sync")

    p.raw("L_k2_load:")
    p(f"s_sub_u32 s{S_LV}, s{S_W}, 4")
    p("v_lshrrev_b32 v4, 5, v2")
    p("v_bfe_u32 v5, v2, 1, 4")
    p("v_and_b32 v6, 1, v2")
    p(f"s_lshl_b32 s{S_T0}, s{S_LV}, 15")
    p(f"s_lshl_b32 s{S_T1}, s{S_RB}, 9")
    p(f"s_add_u32 s{S_T0}, s{S_T0}, s{S_T1}")
    p(f"s_add_u32 s{S_T0}, s{S_T0}, {WS_HT}")
    for i in range(4):
        p(f"v_add_u32 v7, {2*i}, v4")
        p("v_xor_b32 v125, v7, v5")
        p("v_lshlrev_b32 v125, 5, v125")
        p("v_lshl_add_u32 v125, v6, 4, v125")
        p("v_lshl_add_u32 v125, v7, 12, v125")
        p(f"v_add_u32 v{120+i}, s{S_T0}, v125")
    p("v_lshrrev_b32 v4, 3, v2")
    p("v_bfe_u32 v5, v2, 1, 2")
    p("v_lshrrev_b32 v7, 1, v4")
    p("v_xor_b32 v5, v5, v7")
    p("v_lshlrev_b32 v5, 5, v5")
    p("v_lshl_add_u32 v5, v6, 4, v5")
    p("v_mul_u32_u24 v4, 3584, v4")
    p(f"s_mul_i32 s{S_T0}, s{S_LV}, {8*3584}")
    p(f"s_lshl_b32 s{S_T1}, s{S_FS}, 7")
    p(f"s_add_u32 s{S_T0}, s{S_T0}, s{S_T1}")
    p(f"v_add3_u32 v124, v4, v5, s{S_T0}")
    p(f"s_lshl_b32 s74, s{S_LV}, 12")
    p(f"s_lshl_b32 s75, s{S_LV}, 10")
    def dma(s):
        st = (s % NST) * STG
        p(f"s_mov_b32 s{S_T1}, {s*32*3584}")
        p(f"s_add_u32 m0, s75, {st + 16384}")
        p(f"buffer_load_dwordx4 v124, s[60:63], s{S_T1} offen lds")
        p(f"s_add_u32 m0, s75, {st + 16384 + 4096}")
        p(f"buffer_load_dwordx4 v124, s[64:67], s{S_T1} offen lds")
        p(f"s_mov_b32 s{S_T1}, {s*32*4096}")
        for i in range(4):
            p(f"s_add_u32 m0, s74, {st + 1024*i}")
            p(f"buffer_load_dwordx4 v{120+i}, s[56:59], s{S_T1} offen lds")
    p(f"s_mul_i32 s76, s{S_LV}, 7168")
    p("v_lshl_add_u32 v127, v2, 4, s76")
    def wdl_addr(lv_stride_idx, i):
        return None
    def wdl(lo, hi):
        for i in range(lo, hi):
            ks, j = divmod(i, 4)
            p(f"s_add_u32 s{S_T0}, s{S_A}, {j*57344 + ks*1024}")
            p(f"s_add_u32 m0, s75, {WPOS[i]}")
            p(f"buffer_load_dwordx4 v127, s[56:59], s{S_T0} offen lds")
    issued = 3
    for s in range(issued): dma(s)
    ts(p, 1, 1)
    for s in range(11):
        p(f"s_waitcnt vmcnt({6*(issued - s - 1)})")
        if STAGES: tsc(p, s)
        p("s_barrier")
        dma(issued); issued += 1
    assert issued == 14
    p(f"s_cmp_eq_u32 s{S_LV}, 1")
    p("s_cbranch_scc1 L_k2_x1")
    p("v_cmp_lt_u32 vcc, 31, v2")
    p(f"v_mov_b32 v126, {7168 - 256}")
    p("v_cndmask_b32 v126, 0, v126, vcc")
    p("v_lshl_add_u32 v126, v2, 3, v126")
    p(f"s_lshl_b32 s{S_T1}, s{S_FS}, 8")
    p(f"s_add_u32 s{S_T1}, s{S_T1}, {WS_PCS}")
    p(f"v_add_u32 v126, s{S_T1}, v126")
    for i in range(4):
        p(f"s_mov_b32 s{S_T1}, {i*14336}")
        p(f"buffer_load_dwordx2 v[{128+2*i}:{129+2*i}], v126, s[56:59], s{S_T1} offen")
    p("s_branch L_k2_x2")
    p.raw("L_k2_x1:")
    p(f"s_lshl_b32 s{S_T1}, s{S_RB}, 11")
    p(f"s_add_u32 s{S_T1}, s{S_T1}, {WS_ST2}")
    p(f"v_lshl_add_u32 v126, v2, 3, s{S_T1}")
    for i in range(4):
        p(f"buffer_load_dwordx2 v[{128+2*i}:{129+2*i}], v126, s[56:59], 0 offen offset:{512*i} sc1")
    p.raw("L_k2_x2:")
    nwd = 0
    for s in range(11, 14):
        p(f"s_waitcnt vmcnt({6*(13-s) + 4 + nwd})")
        p("s_barrier")
        if STAGES: tsc(p, s)
        wdl(nwd, nwd + 6); nwd += 6
    p(f"s_waitcnt vmcnt({nwd}) lgkmcnt(0)")
    p(f"s_cmp_eq_u32 s{S_LV}, 1")
    p("s_cbranch_scc1 L_k2_y1")
    p(f"s_cmp_lg_u32 s{S_LV}, 0")
    p("s_cbranch_scc1 L_k2_y2")
    p("v_pk_add_f32 v[128:129], v[128:129], v[130:131]")
    p("v_pk_add_f32 v[132:133], v[132:133], v[134:135]")
    p("v_pk_add_f32 v[128:129], v[128:129], v[132:133]")
    p("v_lshlrev_b32 v126, 3, v2")
    p(f"v_add_u32 v126, {L2_CS}, v126")
    p("ds_write_b64 v126, v[128:129]")
    p("s_branch L_k2_y2")
    p.raw("L_k2_y1:")
    p(f"v_xor_b32 v136, s{S_TAG}, v129")
    for r in (131, 133, 135):
        p(f"v_xor_b32 v137, s{S_TAG}, v{r}")
        p("v_or_b32 v136, v136, v137")
    p("v_cmp_ne_u32 vcc, 0, v136")
    p("s_cbranch_vccz L_k2_y1ok")
    for i in range(4):
        p(f"buffer_load_dwordx2 v[{128+2*i}:{129+2*i}], v126, s[56:59], 0 offen offset:{512*i} sc1")
    p("s_waitcnt vmcnt(0)")
    p("s_branch L_k2_y1")
    p.raw("L_k2_y1ok:")
    p("v_lshlrev_b32 v126, 3, v2")
    p(f"v_add_u32 v126, {L2_ST}, v126")
    for i in range(4):
        r = 128 + 2 * i
        p(f"v_and_b32 v{r+1}, 0xffff0000, v{r}")
        p(f"v_mul_f32 v{r+1}, v{r+1}, v{r+1}")
        p(f"v_rcp_f32 v{r+1}, v{r+1}")
        p(f"v_lshlrev_b32 v{r}, 16, v{r}")
        p(f"v_xor_b32 v{r}, 0x80000000, v{r}")
        p(f"ds_write_b64 v126, v[{r}:{r+1}] offset:{512*i}")
    p.raw("L_k2_y2:")
    p("s_waitcnt lgkmcnt(0)")
    p("s_barrier")
    wdl(nwd, 28)
    wd_loads()
    p("s_waitcnt vmcnt(28)")
    ts(p, 3, 1)

    p("s_barrier")
    p.raw("L_k2_sync:")
    ts(p, 4, 1)
    p("v_and_b32 v4, 15, v2")
    p("v_lshrrev_b32 v5, 4, v2")
    p(f"s_lshr_b32 s{S_T0}, s{S_W}, 1")
    p(f"s_lshl_b32 s{S_T0}, s{S_T0}, 4")
    p(f"s_lshr_b32 s{S_T1}, s{S_FS}, 2")
    p(f"s_lshl_b32 s{S_T1}, s{S_T1}, 6")
    p(f"s_add_u32 s68, s{S_T0}, s{S_T1}")
    p(f"s_and_b32 s{S_T0}, s{S_W}, 1")
    p(f"s_lshl_b32 s{S_T0}, s{S_T0}, 5")
    p(f"s_and_b32 s{S_T1}, s{S_FS}, 3")
    p(f"s_lshl_b32 s{S_T1}, s{S_T1}, 6")
    p(f"s_add_u32 s69, s{S_T0}, s{S_T1}")
    p(f"s_cmp_lg_u32 s{S_W}, 7")
    p("s_cbranch_scc1 L_k2_nopoll")
    p(f"s_lshl_b32 s{S_T0}, s{S_RB}, 12")
    p(f"s_add_u32 s{S_T0}, s{S_T0}, {WS_FLG}")
    p(f"s_lshl_b32 s{S_T1}, s{S_FS}, 7")
    p(f"s_add_u32 s{S_T1}, s{S_T1}, s{S_T0}")
    p(f"v_mov_b32 v120, s{S_T1}")
    p(f"v_mov_b32 v121, s{S_TAG}")
    p("s_mov_b64 exec, 1")
    p("buffer_store_dword v121, v120, s[56:59], 0 offen sc1")
    p("s_mov_b64 exec, -1")
    p("v_min_u32 v120, 27, v2")
    p(f"v_lshl_add_u32 v120, v120, 7, s{S_T0}")
    p.raw("L_k2_poll:")
    p("buffer_load_dword v122, v120, s[56:59], 0 offen sc1")
    p("s_waitcnt vmcnt(0)")
    p("v_cmp_ne_u32 vcc, v121, v122")
    p("s_cbranch_vccnz L_k2_poll")
    p.raw("L_k2_nopoll:")
    p("v_add_u32 v6, s69, v4")
    p("v_lshl_add_u32 v7, v5, 2, s68")
    p(f"s_lshl_b32 s{S_T0}, s{S_RB}, 8")
    p(f"v_add_u32 v120, s{S_T0}, v6")
    p("v_lshlrev_b32 v121, 12, v7")
    p("v_lshl_add_u32 v121, v120, 1, v121")
    p(f"v_add_u32 v121, {WS_HT}, v121")
    p("v_mul_u32_u24 v122, 896, v120")
    p("v_lshl_add_u32 v122, v7, 1, v122")
    p("v_lshlrev_b32 v6, 3, v6")
    p(f"v_add_u32 v6, {L2_ST + 4}, v6")
    p("ds_read_b32 v123, v6")
    p("ds_read_b32 v124, v6 offset:128")
    p("s_waitcnt lgkmcnt(0)")
    p("s_barrier")
    ts(p, 5, 1)
    if not STAGES: tsc(p, 14)
    HM = 128; NSET = 4
    AC2 = 192
    def hm_loads(ks):
        for t in range(4):
            r = HM + (ks % NSET) * 16 + 4 * t
            p(f"s_add_u32 s{S_T0}, s{S_B}, {t*57344 + ks*1024}")
            p(f"buffer_load_dwordx4 v[{r}:{r+3}], v3, s[56:59], s{S_T0} offen sc1")
    for ks in range(NSET): hm_loads(ks)
    issued = NSET
    for ks in range(7):
        p(f"s_waitcnt vmcnt({4*(issued-ks-1)})")
        for j in range(4):
            for t in range(4):
                d = AC2 + (j * 4 + t) * 4
                p(f"v_mfma_f32_16x16x32_bf16 {vr(d,4)}, {vr(WD+(ks*4+j)*4,4)}, {vr(HM+(ks%NSET)*16+4*t,4)}, {'0' if ks == 0 else vr(d,4)}")
        if issued < 7:
            hm_loads(issued); issued += 1
    ts(p, 6, 1)
    for t in range(2):
        for r in range(4):
            p(f"s_mov_b32 s{S_T0}, {4096*r + 32*t}")
            p(f"buffer_load_ushort v{16+4*t+r}, v121, s[56:59], s{S_T0} offen")
    p(f"s_lshl_b32 s{S_T0}, s{S_W}, 14")
    p(f"v_lshl_add_u32 v10, v2, 4, s{S_T0}")
    for i in range(16):
        p(f"ds_write_b128 v10, v[{AC2+4*i}:{AC2+4*i+3}] offset:{1024*i}")
    p(f"s_lshl_b32 s{S_T0}, s{S_W}, 11")
    p(f"v_lshl_add_u32 v11, v2, 4, s{S_T0}")
    p("v_add_u32 v12, 65536, v11")
    p("s_waitcnt lgkmcnt(0)")
    p("s_barrier")
    for t in range(2):
        for src in range(8):
            r = 32 + (t * 8 + src) * 4
            p(f"ds_read_b128 v[{r}:{r+3}], v{11 + src // 4} offset:{(src % 4) * 16384 + t * 1024}")
    for t in range(2):
        p(f"s_waitcnt lgkmcnt({8*(1-t)})")
        b = 32 + t * 32
        for st in (4, 2, 1):
            for i in range(st):
                for q in range(2):
                    x = b + 4 * i + 2 * q; y = b + 4 * (i + st) + 2 * q
                    p(f"v_pk_add_f32 v[{x}:{x+1}], v[{x}:{x+1}], v[{y}:{y+1}]")
        if t == 0: p("s_waitcnt vmcnt(0)")
        for r in range(4): p(f"v_mul_f32 v{b+r}, v{123+t}, v{b+r}")
        p(f"v_cvt_pk_bf16_f32 v{b+4}, v{b}, v{b+1}")
        p(f"v_cvt_pk_bf16_f32 v{b+5}, v{b+2}, v{b+3}")
        for r in range(4):
            src = b + 4 + r // 2
            p(f"v_lshlrev_b32 v{b+r}, 16, v{src}" if r % 2 == 0 else f"v_and_b32 v{b+r}, 0xffff0000, v{src}")
            p(f"v_lshlrev_b32 v{16+4*t+r}, 16, v{16+4*t+r}")
            p(f"v_add_f32 v{b+r}, v{b+r}, v{16+4*t+r}")
        p(f"v_cvt_pk_bf16_f32 v{b+4}, v{b}, v{b+1}")
        p(f"v_cvt_pk_bf16_f32 v{b+5}, v{b+2}, v{b+3}")
        if t == 1: p(f"v_add_u32 v122, {16*896}, v122")
        p(f"global_store_dwordx2 v122, v[{b+4}:{b+5}], {sp(P_OUT)}")
    ts(p, 7, 1)
    if not STAGES: tsc(p, 15)
    ts_flush(p, 1, P_WS, S_W)
    p("s_endpgm")

    p.raw("L_k2_aux:")
    p(f"s_sub_u32 s{S_T0}, s{S_FS}, 28")
    p(f"s_lshl_b32 s{S_T0}, s{S_T0}, 6")
    p(f"s_lshl_b32 s{S_T1}, s{S_RB}, 8")
    p(f"s_add_u32 s{S_T2}, s{S_T0}, s{S_T1}")
    p(f"s_lshl_b32 s{S_T0}, s{S_T2}, 1")
    p(f"s_add_u32 s{S_T0}, s{S_T0}, {WS_HT}")
    p("v_and_b32 v3, 7, v0")
    p("v_lshrrev_b32 v4, 3, v0")
    p(f"v_mul_u32_u24 v5, {7*4096}, v4")
    p("v_lshl_add_u32 v5, v3, 4, v5")
    p(f"v_add_u32 v5, s{S_T0}, v5")
    for i in range(7):
        p(f"s_mov_b32 s{S_T1}, {4096*i}")
        p(f"buffer_load_dwordx4 v[{8+4*i}:{11+4*i}], v5, s[56:59], s{S_T1} offen")
    for i in range(16): p(f"v_mov_b32 v{48+i}, 0")
    for i in range(7):
        p(f"s_waitcnt vmcnt({6-i})")
        for k in range(4):
            p(f"v_lshlrev_b32 v{40+2*k}, 16, v{8+4*i+k}")
            p(f"v_and_b32 v{41+2*k}, 0xffff0000, v{8+4*i+k}")
        for k in range(4):
            p(f"v_pk_add_f32 v[{48+2*k}:{49+2*k}], v[{48+2*k}:{49+2*k}], v[{40+2*k}:{41+2*k}]")
            p(f"v_pk_fma_f32 v[{56+2*k}:{57+2*k}], v[{40+2*k}:{41+2*k}], v[{40+2*k}:{41+2*k}], v[{56+2*k}:{57+2*k}]")
    for i in range(16):
        p(f"v_add_f32_dpp v{48+i}, v{48+i}, v{48+i} row_ror:8 row_mask:0xf bank_mask:0xf")
    p("v_lshrrev_b32 v6, 4, v0")
    p("v_lshlrev_b32 v6, 9, v6")
    p("v_lshl_add_u32 v6, v3, 6, v6")
    for i in range(4): p(f"ds_write_b128 v6, v[{48+4*i}:{51+4*i}] offset:{16*i}")
    p("s_waitcnt lgkmcnt(0)")
    p("s_barrier")
    p(f"s_cmp_lg_u32 s{S_W}, 0")
    p(f"s_cbranch_scc1 L_{name}_exit")
    p("v_lshrrev_b32 v6, 3, v2")
    p("v_lshlrev_b32 v6, 6, v6")
    p("v_and_b32 v7, 7, v2")
    p("v_lshl_add_u32 v6, v7, 2, v6")
    for g in range(32):
        if g % 2 == 0 and g: p("v_add_u32 v6, 1024, v6")
        p(f"ds_read2_b32 v[{8+2*g}:{9+2*g}], v6 offset0:{(g%2)*128} offset1:{(g%2)*128+8}")
    p("s_waitcnt lgkmcnt(0)")
    for g in range(2, 32):
        a = 8 + 2 * (g & 1)
        p(f"v_pk_add_f32 v[{a}:{a+1}], v[{a}:{a+1}], v[{8+2*g}:{9+2*g}]")
    p("v_pk_add_f32 v[8:9], v[8:9], v[10:11]")
    ln_finish(p, 8, 9, 10)
    p(f"v_mov_b32 v11, s{S_TAG}")
    p(f"s_lshl_b32 s{S_T0}, s{S_T2}, 3")
    p(f"s_add_u32 s{S_T0}, s{S_T0}, {WS_ST2}")
    p(f"v_lshl_add_u32 v6, v2, 3, s{S_T0}")
    p("buffer_store_dwordx2 v[10:11], v6, s[56:59], 0 offen sc1")
    ts(p, 7, 1)
    ts_flush(p, 1, P_WS, S_W)
    p.raw(f"L_{name}_exit:")
    p("s_endpgm")

def launches(): return [("k2_kernel", 256, 512, L2_END)]
def gen():
    p = Prog(); gen_k2(p); t = p.render()
    return t, kd("k2_kernel", 256, 102)
```

```python
import sys, struct
import numpy as np
from asmgen import *

NAME = "sequential_preLN__ssm_conv_s4__glu_gated_reglu__prompt"
DIAG = "--diag" in sys.argv

WS_EPOCH = 0
WS_ST1 = 0x1000
WS_ST2 = 0x6000
WS_CS = 0xB000
WS_HT = 0x10000
WS_WDF = 0x200000
WS_HMF = 0x400000
WS_PCS = 0xB00000
WS_TS = 0xC00000
WS_XT = 0x1000000
WS_FLG = 0xB80000
WS_SIZE = 0x1400000

def f32(x): return struct.unpack("<I", struct.pack("<f", x))[0]
def hx(x): return "0x%08x" % x
LOG2E = 1.4426950408889634
L2E_HI = float(np.float32(LOG2E)); L2E_LO = float(np.float32(LOG2E - L2E_HI))

def bf16_round_int(l):
    u = np.float32(l).view(np.uint32)
    r = ((int(u) + 0x7FFF + ((int(u) >> 16) & 1)) >> 16) << 16
    return int(np.uint32(r).view(np.float32))

HI0 = [1, 2, 3, 4, 5, 6, 7, 8, 258, 260, 262, 264, 516, 520, 772, 776]
HI1 = [1032, 1288, 1544, 1800, 0]
def kacc_addr(t):
    cands = []
    for Mt, rows in ((0, HI0), (1, HI1)):
        for row, hi in enumerate(rows):
            if t >= hi and (t - hi) % 8 == 0 and (t - hi) // 8 < 32:
                q = (t - hi) // 8
                cands.append((Mt * 2 + (q >> 4)) * 1024 + (row & 3) * 256 + ((row >> 2) * 16 + (q & 15)) * 4)
    assert cands, t
    return cands[0]
def gather_table():
    tab = []
    for x in range(2048 + 8):
        tab.append(kacc_addr(bf16_round_int(2047 - x)) if x <= 2047 else 4096)
    return tab

TPITCH = 1040
TB = 55120
L_TAB = 0
L_PX = 0
L_KACC = 2 * TB
KACC_CH = 4096 + 64
L_KE = L_KACC + 2 * KACC_CH
KCOPY = 4096 + 64 + 64
KE_CH = 2 * KCOPY
L_U = L_KE + 2 * KE_CH
U_CH = 512 + 4096
L_X = L_U + 2 * U_CH
XRP = 912
L_XR = L_X + 2 * 4096
L_K1_END = L_XR + 8 * XRP + 128
assert L_KACC % 16 == 0 and L_KE % 16 == 0 and L_U % 16 == 0 and L_X % 16 == 0
assert L_K1_END <= 163840, L_K1_END
O_OFF = 4096 + 64
assert (O_OFF // 4) % 32 == 16 and O_OFF + 4096 + 64 <= KE_CH

def cmul(p, d, a, b, conj=False, tmp=None):
    t = tmp if tmp is not None else d
    p(f"v_pk_mul_f32 {vr(t,2)}, {vr(a,2)}, {vr(b,2)} op_sel:[0,0] op_sel_hi:[1,0]")
    neg = "neg_hi" if conj else "neg_lo"
    p(f"v_pk_fma_f32 {vr(d,2)}, {vr(a,2)}, {vr(b,2)}, {vr(t,2)} op_sel:[1,1,0] op_sel_hi:[0,1,1] {neg}:[1,0,0]")

def ts(p, slot, kern, sreg=96):
    if not DIAG: return
    p(f"s_memrealtime s[{sreg}:{sreg+1}]")
    p("s_waitcnt lgkmcnt(0)")
    p(f"s_mov_b32 s{80+slot}, s{sreg}")

def tsc(p, slot, sreg=96):
    if not DIAG: return
    p(f"s_memtime s[{sreg}:{sreg+1}]")
    p("s_waitcnt lgkmcnt(0)")
    p(f"s_mov_b32 s{80+slot}, s{sreg}")

def ts_init(p):
    if not DIAG: return
    for i in range(16): p(f"s_mov_b32 s{80+i}, 0")

def ts_flush(p, kern, ws_pair, wave_sreg):
    if not DIAG: return
    p("s_nop 7\ns_nop 7")
    for i in range(16): p(f"v_writelane_b32 v1, s{80+i}, {i}")
    p(f"s_lshl_b32 s96, s2, 3")
    p(f"s_add_u32 s96, s96, s{wave_sreg}")
    p(f"s_lshl_b32 s96, s96, 6")
    p(f"s_add_u32 s96, s96, {WS_TS + kern * 0x40000}")
    p(f"v_mbcnt_lo_u32_b32 v0, -1, 0")
    p(f"v_mbcnt_hi_u32_b32 v0, -1, v0")
    p(f"v_lshl_add_u32 v0, v0, 2, s96")
    p(f"s_mov_b64 exec, 0xffff")
    p(f"global_store_dword v0, v1, s[{ws_pair}:{ws_pair+1}]")
    p(f"s_mov_b64 exec, -1")

P_X, P_ARE, P_AIM, P_BRE, P_BIM, P_CRE, P_CIM, P_LDT = [16 + 2 * i for i in range(8)]
P_DSK, P_BX, P_WG, P_WU, P_WD, P_OUT, P_DBG, P_WS = [32 + 2 * i for i in range(8)]
def sp(b): return f"s[{b}:{b+1}]"

def prologue(p, name, nwg):
    p.raw(f".globl {name}\n.p2align 8\n.type {name},@function\n{name}:")
    p(f"s_cmp_ge_u32 s2, {nwg}")
    p(f"s_cbranch_scc1 L_{name}_exit")
    p("s_load_dwordx16 s[16:31], s[0:1], 0")
    p("s_load_dwordx16 s[32:47], s[0:1], 64")
    ts_init(p)

def wave_red(p, regs):
    for mod in ("quad_perm:[1,0,3,2] row_mask:0xf", "quad_perm:[2,3,0,1] row_mask:0xf", "row_half_mirror row_mask:0xf",
                "row_mirror row_mask:0xf", "row_bcast:15 row_mask:0xa", "row_bcast:31 row_mask:0xc"):
        for r in regs:
            p(f"v_add_f32_dpp v{r}, v{r}, v{r} {mod} bank_mask:0xf")

def ln_finish(p, sm, sq, dst):
    p(f"v_mul_f32 v{sm}, {hx(f32(1.0/448))}, v{sm}")
    p(f"v_mul_f32 v{sq}, {hx(f32(1.0/448))}, v{sq}")
    p(f"v_fma_f32 v{sq}, -v{sm}, v{sm}, v{sq}")
    p(f"v_max_f32 v{sq}, 0, v{sq}")
    p(f"v_cvt_pk_bf16_f32 v{sq}, v{sq}, v{sq}")
    p(f"v_lshlrev_b32 v{sq}, 16, v{sq}")
    p(f"v_add_f32 v{sq}, {hx(f32(1e-5))}, v{sq}")
    p(f"v_cvt_pk_bf16_f32 v{sq}, v{sq}, v{sq}")
    p(f"v_lshlrev_b32 v{sq}, 16, v{sq}")
    p(f"v_sqrt_f32 v{sq}, v{sq}")
    p(f"v_cvt_pk_bf16_f32 v{dst}, v{sm}, v{sq}")

def gen_k1(p):
    name = "k1_kernel"
    prologue(p, name, 256)
    S_W, S_CH, S_V, S_CP, S_D, S_TAG, S_T0, S_T1, S_T2, S_LDT, S_DSK = 48, 49, 50, 51, 52, 53, 54, 55, 56, 57, 58
    p("s_getpc_b64 s[60:61]")
    p.raw("L_k1_pc0:")
    p("v_lshrrev_b32 v1, 6, v0")
    p("v_and_b32 v2, 63, v0")
    p(f"v_readfirstlane_b32 s{S_W}, v1")
    p(f"s_and_b32 s{S_T0}, s2, 7")
    p(f"s_lshr_b32 s{S_T1}, s2, 3")
    p(f"s_min_u32 s{S_T2}, s{S_T1}, 27")
    p(f"s_mul_i32 s{S_CP}, s{S_T0}, 28")
    p(f"s_add_u32 s{S_CP}, s{S_CP}, s{S_T2}")
    p("s_lshl_b32 s62, s2, 3")
    p(f"s_add_u32 s62, s62, s{S_W}")
    p("s_mul_i32 s63, s62, 896")
    p("v_min_u32 v3, 55, v2")
    p("v_lshl_add_u32 v3, v3, 4, s63")
    p(f"s_lshl_b32 s63, s{S_CP}, 10")
    p("v_lshl_add_u32 v4, v0, 1, s63")
    p("v_lshlrev_b32 v1, 7, v0")
    p("s_waitcnt lgkmcnt(0)")
    VR = 16
    VP = 8
    p(f"global_load_dwordx4 v[{VR}:{VR+3}], v3, {sp(P_X)}")
    for i, ptr in enumerate((P_ARE, P_AIM, P_BRE, P_BIM, P_CRE, P_CIM)):
        p(f"global_load_ushort v{VP+i}, v4, {sp(ptr)}")
    p(f"s_load_dword s{S_TAG}, {sp(P_WS)}, {WS_EPOCH}")
    p(f"s_lshl_b32 s63, s{S_CP}, 2")
    p(f"s_add_u32 s64, s{P_LDT}, s63")
    p(f"s_addc_u32 s65, s{P_LDT+1}, 0")
    p(f"s_load_dword s{S_LDT}, s[64:65], 0")
    p(f"s_add_u32 s66, s{P_DSK}, s63")
    p(f"s_addc_u32 s67, s{P_DSK+1}, 0")
    p(f"s_load_dword s{S_DSK}, s[66:67], 0")
    p("v_min_u32 v1, k1_code_end-L_k1_pc0-4, v1")
    p("global_load_dword v25, v1, s[60:61]")
    ts(p, 0, 0)
    p(f"s_lshr_b32 s{S_CH}, s{S_W}, 2")
    p(f"s_and_b32 s{S_V}, s{S_W}, 3")
    p(f"s_lshl_b32 s{S_D}, s{S_CP}, 1")
    p(f"s_add_u32 s{S_D}, s{S_D}, s{S_CH}")
    p("s_add_u32 s60, s60, k1_gtab-L_k1_pc0")
    p("s_addc_u32 s61, s61, 0")
    p("v_and_b32 v5, 255, v0")
    p("v_lshlrev_b32 v5, 4, v5")
    VG = 20
    p(f"global_load_dwordx4 v[{VG}:{VG+3}], v5, s[60:61]")
    p(f"global_load_ushort v{VG+4}, v5, s[60:61] offset:16")
    p("v_mov_b32 v28, 0\nv_mov_b32 v29, 0\nv_mov_b32 v30, 0\nv_mov_b32 v31, 0")
    p("v_lshlrev_b32 v26, 4, v2")
    p("s_mov_b64 exec, 0xf")
    p(f"v_add_u32 v27, {L_KACC}, v26")
    for ch in range(2):
        p(f"ds_write_b128 v27, v[28:31] offset:{ch*KACC_CH + 4096}")
        for cp_off in (0, O_OFF):
            p(f"ds_write_b128 v27, v[28:31] offset:{L_KE - L_KACC + ch*KE_CH + cp_off + 4096}")
    p("s_mov_b32 exec_lo, -1")
    p(f"v_add_u32 v27, {L_KACC}, v26")
    for ch in range(2):
        p(f"ds_write_b128 v27, v[28:31] offset:{L_U - L_KACC + ch*U_CH}")
    p("s_mov_b64 exec, -1")
    p(f"s_mul_i32 s{S_T0}, s{S_CH}, {TB}")
    p(f"s_lshl_b32 s63, s{S_V}, 8")
    p(f"s_add_u32 m0, s{S_T0}, s63")
    VT = 32
    p("v_and_b32 v33, 15, v2")
    p("v_lshrrev_b32 v34, 4, v2")
    p(f"v_mul_u32_u24 v{VT}, {TPITCH}, v33")
    p(f"v_lshl_add_u32 v{VT}, v34, 8, v{VT}")
    p(f"s_and_b32 s63, s{S_V}, 1")
    p(f"s_mul_i32 s63, s63, {16*TPITCH}")
    p(f"s_add_u32 s63, s63, s{S_T0}")
    p(f"v_add_u32 v{VT+3}, s63, v{VT}")
    p(f"s_lshr_b32 s63, s{S_V}, 1")
    p(f"s_mul_i32 s63, s63, {16*TPITCH}")
    p(f"s_add_u32 s63, s63, s{S_T0}")
    p(f"s_add_u32 s63, s63, {32*TPITCH}")
    p(f"v_add_u32 v{VT}, s63, v{VT}")
    p(f"s_mul_i32 s63, s{S_W}, {XRP}")
    p(f"s_add_u32 s63, s63, {L_XR}")
    p("v_min_u32 v27, 55, v2")
    p("v_lshl_add_u32 v27, v27, 4, s63")
    p("v_and_b32 v28, 3, v0")
    p(f"v_mul_u32_u24 v28, {2*XRP}, v28")
    p("v_and_b32 v29, -4, v0")
    p(f"v_add3_u32 v28, v28, v29, {L_XR}" if False else "v_add_u32 v28, v28, v29")
    p(f"v_add_u32 v28, {L_XR}, v28")
    p("s_mul_i32 s63, s2, 14336")
    p(f"s_add_u32 s63, s63, {WS_XT}")
    p("v_lshl_add_u32 v29, v0, 4, s63")
    p("s_lshl_b32 s62, s2, 6")
    p(f"s_add_u32 s62, s62, {WS_ST1}")
    p("v_and_b32 v30, 3, v0")
    p("v_lshl_add_u32 v30, v30, 4, s62")
    p("v_lshrrev_b32 v52, 2, v0")
    p("v_mov_b32 v31, 0x3f803f80")
    p("v_cmp_gt_u32 vcc, 56, v2")
    p("s_waitcnt lgkmcnt(0)")
    p(f"s_add_u32 s{S_TAG}, s{S_TAG}, 2")
    p(f"s_or_b32 s{S_TAG}, s{S_TAG}, 1")
    p(f"s_lshl_b32 s63, s{S_CH}, 4")
    p(f"s_lshr_b32 s{S_LDT}, s{S_LDT}, s63")
    p(f"s_lshl_b32 s{S_LDT}, s{S_LDT}, 16")
    p(f"s_lshr_b32 s{S_DSK}, s{S_DSK}, s63")
    p(f"s_lshl_b32 s{S_DSK}, s{S_DSK}, 16")
    p(f"v_mov_b32 v36, s{S_LDT}")
    p(f"v_mov_b32 v37, {hx(f32(L2E_HI))}")
    p("v_mul_f32 v38, v36, v37")
    p("v_fma_f32 v39, v36, v37, -v38")
    p(f"v_fmac_f32 v39, {hx(f32(L2E_LO))}, v36")
    p("v_exp_f32 v38, v38")
    p(f"v_mul_f32 v39, {hx(f32(0.6931471805599453))}, v39")
    p("v_fma_f32 v38, v38, v39, v38")
    p("v_cvt_pk_bf16_f32 v38, v38, v38")
    p("v_lshlrev_b32 v36, 16, v38")
    for r in (41, 43, 45, 47): p(f"v_mov_b32 v{r}, s{S_TAG}")
    p("s_waitcnt vmcnt(9)")
    ts(p, 1, 0)
    p(f"ds_write_b128 v27, v[{VR}:{VR+3}]")
    for i in range(4): p(f"v_cndmask_b32 v{VR+i}, 0, v{VR+i}, vcc")
    p(f"v_dot2_f32_bf16 v48, v{VR}, v31, 0")
    p(f"v_dot2_f32_bf16 v49, v{VR}, v{VR}, 0")
    for i in range(1, 4):
        p(f"v_dot2_f32_bf16 v48, v{VR+i}, v31, v48")
        p(f"v_dot2_f32_bf16 v49, v{VR+i}, v{VR+i}, v49")
    p("s_nop 2")
    wave_red(p, (48, 49))
    ln_finish(p, 48, 49, 50)
    p("s_mov_b32 exec_lo, 0")
    p("s_mov_b32 exec_hi, 0x80000000")
    p("ds_write_b32 v27, v50 offset:16")
    p("s_mov_b64 exec, -1")
    p("s_waitcnt lgkmcnt(0)")
    p("s_barrier")
    p("ds_read_b32 v40, v28")
    p(f"ds_read_b32 v42, v28 offset:{XRP}")
    p("ds_read_b32 v44, v28 offset:512")
    p(f"ds_read_b32 v46, v28 offset:{XRP+512}")
    p("s_waitcnt lgkmcnt(2) vmcnt(0)")
    p(f"global_store_dwordx4 v29, v[40:43], {sp(P_WS)} sc1")
    p("v_add_u32 v29, 8192, v29")
    p("s_waitcnt lgkmcnt(0)")
    p("v_cmp_eq_u32 vcc, 96, v52")
    p("v_cndmask_b32 v29, v29, v30, vcc")
    p("v_cmp_gt_u32 vcc, 388, v0")
    p("s_and_saveexec_b64 s[64:65], vcc")
    p("s_cbranch_execz L_k1_nop2")
    p(f"global_store_dwordx4 v29, v[44:47], {sp(P_WS)} sc1")
    p.raw("L_k1_nop2:")
    p("s_mov_b64 exec, -1")
    p(f"s_cmp_ge_u32 s{S_T1}, 28")
    p("s_cbranch_scc1 L_k1_aux")
    ts(p, 8, 0)
    for i in range(6): p(f"v_lshlrev_b32 v{VP+i}, 16, v{VP+i}")
    p(f"v_mul_f32 v{VP}, v36, v{VP}")
    p(f"v_mul_f32 v{VP+1}, v36, v{VP+1}")
    p(f"v_mul_f32 v{VP+2}, v36, v{VP+2}")
    p(f"v_mul_f32 v{VP+3}, v36, v{VP+3}")
    p(f"v_mul_f32 v{VP}, v37, v{VP}")
    p(f"v_mul_f32 v{VP+1}, 0.15915494, v{VP+1}")
    Z1, Z8, Z256, Z2, Z4, Z512 = 40, 42, 44, 46, 48, 50
    p(f"v_mul_f32 v52, {hx(f32(8.0))}, v{VP}")
    p(f"v_mul_f32 v53, {hx(f32(8.0))}, v{VP+1}")
    p(f"v_mul_f32 v54, {hx(f32(256.0))}, v{VP}")
    p(f"v_mul_f32 v55, {hx(f32(256.0))}, v{VP+1}")
    p(f"v_fract_f32 v57, v{VP+1}")
    p("v_fract_f32 v53, v53")
    p("v_fract_f32 v55, v55")
    p("v_exp_f32 v52, v52")
    p(f"v_cos_f32 v{Z8}, v53")
    p(f"v_sin_f32 v{Z8+1}, v53")
    p(f"v_exp_f32 v56, v{VP}")
    p(f"v_cos_f32 v{Z1}, v57")
    p(f"v_sin_f32 v{Z1+1}, v57")
    p("v_exp_f32 v54, v54")
    p(f"v_cos_f32 v{Z256}, v55")
    p(f"v_sin_f32 v{Z256+1}, v55")
    H = 60
    L = [80 + 2 * i for i in range(8)]
    G = 96
    TMP = 124
    p(f"v_pk_mul_f32 v[{Z8}:{Z8+1}], v[{Z8}:{Z8+1}], v[52:53] op_sel:[0,0] op_sel_hi:[1,0]")
    p(f"v_pk_mul_f32 v[{Z1}:{Z1+1}], v[{Z1}:{Z1+1}], v[56:57] op_sel:[0,0] op_sel_hi:[1,0]")
    p(f"v_pk_mul_f32 v[{Z256}:{Z256+1}], v[{Z256}:{Z256+1}], v[54:55] op_sel:[0,0] op_sel_hi:[1,0]")
    tc = [0]
    def batch(ops):
        muls = [o for o in ops if len(o) == 5]
        for (_, d, a_, b_, cj) in muls:
            p(f"v_pk_mul_f32 {vr(d,2)}, {vr(a_,2)}, {vr(b_,2)} op_sel:[0,0] op_sel_hi:[1,0]")
        for (_, d, a_, b_, cj) in muls:
            neg = "neg_hi" if cj else "neg_lo"
            p(f"v_pk_fma_f32 {vr(d,2)}, {vr(a_,2)}, {vr(b_,2)}, {vr(d,2)} op_sel:[1,1,0] op_sel_hi:[0,1,1] {neg}:[1,0,0]")
        puts = [(o[0], o[1]) for o in ops if o[0] is not None]
        ts_ = []
        for (row, z) in puts:
            t = TMP + tc[0] % 8; tc[0] += 1
            p(f"v_cvt_pk_bf16_f32 v{t}, v{z}, v{z+1}"); ts_.append((row, t))
        for (row, t) in ts_:
            p(f"ds_write_addtid_b32 v{t} offset:{row*TPITCH}")
    L2_, L3_, L4_ = L[2], L[3], 120
    p("v_mov_b32 v122, 0x00003f80")
    p("ds_write_addtid_b32 v122 offset:0")
    batch([(None, H, VP + 4, VP + 2, False), (2, L2_, Z8, Z8, False), (None, Z2, Z1, Z1, False), (None, Z512, Z256, Z256, False), (1, Z8)])
    p(f"v_xor_b32 v{H+1}, 0x80000000, v{H+1}")
    batch([(3, L3_, L2_, Z8, False), (4, L4_, L2_, L2_, False), (None, Z4, Z2, Z2, False), (32, H + 2, H, Z1, True), (33, H + 4, H, Z2, True), (39, H + 16, H, Z8, True), (52, H)])
    batch([(5, L[5], Z8, L4_, False), (6, L[6], L2_, L4_, False), (7, L[7], L3_, L4_, False), (34, H + 6, H + 2, Z2, True), (35, H + 8, H, Z4, True), (36, H + 10, H + 2, Z4, True), (37, H + 12, H + 4, Z4, True)])
    src = [L4_, L[5], L[6], L[7]]
    hi_b = [[(38, H + 14, H + 6, Z4, True), (40, G, H + 4, Z256, True), (41, G + 2, H + 8, Z256, True), (43, G + 6, H + 16, Z256, True)],
            [(42, G + 4, H + 12, Z256, True), (44, G + 8, G + 2, Z256, True), (45, G + 10, G + 6, Z256, True)],
            [(46, G + 12, G + 2, Z512, True), (47, G + 14, G + 6, Z512, True)],
            [(48, G + 16, G + 10, Z512, True), (49, G + 18, G + 14, Z512, True)],
            [(50, G + 20, G + 16, Z512, True), (51, G + 22, G + 18, Z512, True)], []]
    for k in range(2, 8):
        dst = L[0:4] if k % 2 == 0 else L[4:8]
        batch([(4 * k + i, dst[i], src[i], L4_, False) for i in range(4)] + hi_b[k - 2])
        src = dst
    ts(p, 2, 0)
    VS = 104
    VXG = 112
    p("v_lshlrev_b32 v6, 5, v0")
    p(f"v_add_u32 v6, {WS_ST1}, v6")
    p("v_lshrrev_b32 v7, 1, v0")
    p("v_mul_u32_u24 v7, 14336, v7")
    p("v_and_b32 v14, 1, v0")
    p("v_lshl_add_u32 v7, v14, 5, v7")
    p(f"s_lshl_b32 s63, s{S_CP}, 6")
    p(f"s_add_u32 s63, s63, {WS_XT}")
    p("v_add_u32 v14, s63, v7")
    def handoff_loads():
        p(f"global_load_dwordx4 v[{VXG}:{VXG+3}], v14, {sp(P_WS)} sc1")
        p(f"global_load_dwordx4 v[{VXG+4}:{VXG+7}], v14, {sp(P_WS)} offset:16 sc1")
        p(f"global_load_dwordx4 v[{VS}:{VS+3}], v6, {sp(P_WS)} sc1")
        p(f"global_load_dwordx4 v[{VS+4}:{VS+7}], v6, {sp(P_WS)} offset:16 sc1")
    p("s_waitcnt lgkmcnt(0)")
    p("s_barrier")
    F = 128
    KA = 120
    for s_ in range(16):
        p(f"ds_read_b128 v[{F+8*s_}:{F+8*s_+3}], v{VT} offset:{16*s_}")
        p(f"ds_read_b128 v[{F+8*s_+4}:{F+8*s_+7}], v{VT+3} offset:{16*s_}")
    for s_ in range(16):
        p(f"s_waitcnt lgkmcnt({min(15, 2*(15-s_))})")
        c = "0" if s_ == 0 else vr(KA, 4)
        p(f"v_mfma_f32_16x16x32_bf16 {vr(KA,4)}, {vr(F+8*s_,4)}, {vr(F+8*s_+4,4)}, {c}")
    handoff_loads()
    assert all(((q * 4682) >> 16) == q // 14 for q in range(512))
    p(f"s_mov_b32 s72, s{P_WD}\ns_mov_b32 s73, s{P_WD+1}\ns_mov_b32 s74, {1792*896}\ns_mov_b32 s75, 0x00020000")
    p("v_min_u32 v15, 447, v0")
    p("v_mul_u32_u24 v26, 4682, v15")
    p("v_lshrrev_b32 v26, 16, v26")
    p("v_mul_u32_u24 v27, 14, v26")
    p("v_sub_u32 v27, v15, v27")
    p("v_mul_u32_u24 v26, 896, v26")
    p("v_lshl_add_u32 v26, v27, 4, v26")
    p(f"s_lshr_b32 s64, s{S_CP}, 2")
    p(f"s_mul_i32 s64, s64, {32*896}")
    p(f"s_and_b32 s65, s{S_CP}, 3")
    p("s_mul_i32 s65, s65, 224")
    p("s_add_u32 s64, s64, s65")
    p(f"s_min_u32 s65, s{S_W}, 6")
    p("s_lshl_b32 s65, s65, 10")
    p(f"s_add_u32 m0, s65, {L_XR}")
    p(f"s_cmp_eq_u32 s{S_W}, 7")
    p("s_cbranch_scc1 L_k1_nowd")
    p("buffer_load_dwordx4 v26, s[72:75], s64 offen lds")
    p.raw("L_k1_nowd:")
    p(f"s_mul_i32 s{S_T0}, s{S_CH}, {KACC_CH}")
    p(f"s_add_u32 s{S_T0}, s{S_T0}, {L_KACC}")
    GA = 60
    for i in range(4):
        p(f"v_and_b32 v{GA+2*i}, 0xffff, v{VG+i}")
        p(f"v_lshrrev_b32 v{GA+2*i+1}, 16, v{VG+i}")
    p(f"v_mov_b32 v{GA+8}, v{VG+4}")
    for i in range(9): p(f"v_add_u32 v{GA+i}, s{S_T0}, v{GA+i}")
    p(f"s_lshl_b32 s63, s{S_V}, 10")
    p(f"s_add_u32 s63, s63, s{S_T0}")
    p("v_lshl_add_u32 v7, v2, 2, s63")
    p(f"s_mul_i32 s{S_T0}, s{S_CH}, {KE_CH}")
    p(f"s_add_u32 s{S_T0}, s{S_T0}, {L_KE}")
    p(f"v_add_u32 v27, s{S_T0}, v5")
    VA = 36
    p("v_lshlrev_b32 v35, 3, v34")
    p("v_sub_u32 v35, v35, v33")
    p("v_add_u32 v35, 2031, v35")
    p("v_and_b32 v35, -2, v35")
    p("v_lshlrev_b32 v35, 1, v35")
    p("v_and_b32 v26, 1, v33")
    p("v_sub_u32 v26, 1, v26")
    p(f"v_mul_u32_u24 v26, {O_OFF}, v26")
    p(f"s_lshl_b32 s63, s{S_V}, 7")
    p(f"s_sub_u32 s{S_T0}, s{S_T0}, s63")
    p(f"s_sub_u32 s{S_T0}, s{S_T0}, {64 + 512}")
    p(f"v_add3_u32 v{VA}, v35, v26, s{S_T0}")
    p(f"ds_write2st64_b32 v7, v{KA}, v{KA+1} offset0:0 offset1:1")
    p(f"ds_write2st64_b32 v7, v{KA+2}, v{KA+3} offset0:2 offset1:3")
    for k in range(1, 4): p(f"v_subrev_u32 v{VA+k}, {1024*k}, v{VA}")
    VB = 40
    p(f"s_mul_i32 s{S_T0}, s{S_CH}, {U_CH}")
    p(f"s_add_u32 s{S_T0}, s{S_T0}, {L_U + 512 - 32 - 64}")
    p(f"s_sub_u32 s{S_T0}, s{S_T0}, s63")
    p("v_lshlrev_b32 v26, 5, v33")
    p("v_lshl_add_u32 v26, v34, 4, v26")
    p(f"v_add_u32 v{VB}, s{S_T0}, v26")
    p("s_waitcnt lgkmcnt(0)")
    p("s_barrier")
    ts(p, 3, 0)
    GV = 70
    for i in range(9): p(f"ds_read_b32 v{GV+i}, v{GA+i}")
    p("s_waitcnt lgkmcnt(0)")
    for i in range(4):
        p(f"v_cvt_pk_bf16_f32 v{80+i}, v{GV+2*i}, v{GV+2*i+1}")
        p(f"v_cvt_pk_bf16_f32 v{84+i}, v{GV+2*i+1}, v{GV+2*i+2}")
    p("ds_write_b128 v27, v[80:83]")
    p(f"ds_write_b128 v27, v[84:87] offset:{O_OFF}")
    ts(p, 9, 0)
    p.raw("L_k1_poll:")
    p("s_waitcnt vmcnt(0)")
    p(f"v_xor_b32 v88, s{S_TAG}, v{VS+1}")
    for r in (VS + 3, VS + 5, VS + 7, VXG + 1, VXG + 3, VXG + 5, VXG + 7):
        p(f"v_xor_b32 v89, s{S_TAG}, v{r}")
        p("v_or_b32 v88, v88, v89")
    p("v_cmp_ne_u32 vcc, 0, v88")
    p("s_cbranch_vccz L_k1_polldone")
    handoff_loads()
    p("s_branch L_k1_poll")
    p.raw("L_k1_polldone:")
    ts(p, 4, 0)
    U0, U1 = 88, 92
    for j in range(4):
        p(f"v_and_b32 v{128+j}, 0xffff0000, v{VS+2*j}")
        p(f"v_lshlrev_b32 v{132+j}, 16, v{VS+2*j}")
        p(f"v_lshlrev_b32 v{136+j}, 16, v{VXG+2*j}")
        p(f"v_and_b32 v{140+j}, 0xffff0000, v{VXG+2*j}")
    for j in range(4): p(f"v_rcp_f32 v{128+j}, v{128+j}")
    for j in range(4):
        p(f"v_sub_f32 v{136+j}, v{136+j}, v{132+j}")
        p(f"v_sub_f32 v{140+j}, v{140+j}, v{132+j}")
    for j in range(4): p(f"v_cvt_pk_bf16_f32 v{136+j}, v{136+j}, v{140+j}")
    for j in range(4):
        p(f"v_and_b32 v{140+j}, 0xffff0000, v{136+j}")
        p(f"v_lshlrev_b32 v{136+j}, 16, v{136+j}")
    for j in range(4):
        p(f"v_mul_f32 v{U0+j}, v{136+j}, v{128+j}")
        p(f"v_mul_f32 v{U1+j}, v{140+j}, v{128+j}")
    p(f"v_cvt_pk_bf16_f32 v{U0}, v{U0}, v{U0+1}")
    p(f"v_cvt_pk_bf16_f32 v{U0+1}, v{U0+2}, v{U0+3}")
    p(f"v_cvt_pk_bf16_f32 v{U1}, v{U1}, v{U1+1}")
    p(f"v_cvt_pk_bf16_f32 v{U1+1}, v{U1+2}, v{U1+3}")
    p("v_lshlrev_b32 v26, 3, v0")
    p(f"v_add_u32 v27, {L_U + 512}, v26")
    p(f"ds_write_b64 v27, v[{U0}:{U0+1}]")
    p(f"ds_write_b64 v27, v[{U1}:{U1+1}] offset:{U_CH}")
    p("s_mov_b32 s66, 0x05040100")
    p("s_mov_b32 s67, 0x07060302")
    p(f"v_perm_b32 v96, v{VXG+2}, v{VXG}, s66")
    p(f"v_perm_b32 v97, v{VXG+6}, v{VXG+4}, s66")
    p(f"v_perm_b32 v98, v{VXG+2}, v{VXG}, s67")
    p(f"v_perm_b32 v99, v{VXG+6}, v{VXG+4}, s67")
    p(f"ds_write_b64 v27, v[96:97] offset:{L_X - L_U - 512}")
    p(f"ds_write_b64 v27, v[98:99] offset:{L_X - L_U - 512 + 4096}")
    p("s_waitcnt lgkmcnt(0)")
    p("s_barrier")
    ts(p, 5, 0)
    p("v_lshrrev_b32 v26, 2, v2")
    p("v_mul_u32_u24 v26, 224, v26")
    p("v_and_b32 v27, 3, v2")
    p("v_lshl_add_u32 v26, v27, 3, v26")
    p(f"s_min_u32 s65, s{S_W}, 6")
    p("s_lshl_b32 s64, s65, 5")
    p(f"s_add_u32 s64, s64, {L_XR}")
    p("v_add_u32 v26, s64, v26")
    p("ds_read_b64_tr_b16 v[52:53], v26")
    p(f"ds_read_b64_tr_b16 v[54:55], v26 offset:{16*224}")
    p(f"s_and_b32 s64, s{S_CP}, 3")
    p("s_mul_i32 s64, s64, 7")
    p("s_add_u32 s64, s64, s65")
    p("s_mul_i32 s64, s64, 56")
    p(f"s_lshr_b32 s65, s{S_CP}, 2")
    p("s_add_u32 s64, s64, s65")
    p("s_lshl_b32 s64, s64, 10")
    p(f"s_add_u32 s64, s64, {WS_WDF}")
    p("v_lshl_add_u32 v56, v2, 4, s64")
    p(f"s_mul_i32 s64, s{S_T1}, {448*128}")
    p("v_lshl_add_u32 v57, v15, 7, s64")
    p(f"global_load_dword v58, v57, {sp(P_WG)}")
    p(f"global_load_dword v59, v57, {sp(P_WU)}")
    p("s_waitcnt lgkmcnt(0)")
    p(f"global_store_dwordx4 v56, v[52:55], {sp(P_WS)} sc1")
    FA = [64, 128]; FB = [96, 160]
    ACC = 192
    def ld(rr, k):
        a = FA[rr] + 4 * k
        o = (1 - (k & 1)) * 128 + (1 - rr) * 16
        b = FB[rr] + 4 * k
        return [f"ds_read2_b32 v[{a}:{a+1}], v{VA + (k >> 1)} offset0:{o} offset1:{o+1}",
                f"ds_read2_b32 v[{a+2}:{a+3}], v{VA + (k >> 1)} offset0:{o+2} offset1:{o+3}",
                f"ds_read_b128 v[{b}:{b+3}], v{VB} offset:{512*k + (1-rr)*64}"]
    seq = [(rr, k) for rr in range(2) for k in range(8)]
    AHEAD = 5
    for i in range(AHEAD):
        for x in ld(*seq[i]): p(x)
    pend = []
    for j in range(AHEAD, len(seq)): pend += ld(*seq[j])
    issued = 3 * AHEAD
    first = set()
    for i, (rr, k) in enumerate(seq):
        needn = 3 * (i + 1)
        while issued < needn + 3 and pend:
            p(pend.pop(0)); issued += 1
        p(f"s_waitcnt lgkmcnt({min(15, issued - needn)})")
        pairs = [(k, q) for q in range(k + 1) if k + q <= 7] + [(m, k) for m in range(k) if m + k <= 7]
        for (m, q) in pairs:
            n = m + q
            d = ACC + 4 * n
            c = vr(d, 4) if n in first else "0"
            first.add(n)
            p(f"v_mfma_f32_16x16x32_bf16 {vr(d,4)}, {vr(FA[rr]+4*m,4)}, {vr(FB[rr]+4*q,4)}, {c}")
            if pend and issued - needn < 14:
                p(pend.pop(0)); issued += 1
    ts(p, 6, 0)
    p(f"s_lshl_b32 s{S_T0}, s{S_W}, 13")
    p(f"v_lshl_add_u32 v26, v2, 4, s{S_T0}")
    for n in range(8):
        p(f"ds_write_b128 v26, v[{ACC+4*n}:{ACC+4*n+3}] offset:{L_PX + n*1024}")
    p(f"s_lshl_b32 s{S_T0}, s{S_CH}, 15")
    p(f"s_lshl_b32 s63, s{S_V}, 11")
    p(f"s_add_u32 s{S_T0}, s{S_T0}, s63")
    p(f"v_lshl_add_u32 v27, v2, 4, s{S_T0}")
    p("v_lshlrev_b32 v28, 5, v33")
    p("v_lshl_add_u32 v28, v34, 3, v28")
    p(f"s_lshl_b32 s63, s{S_V}, 10")
    p("v_add_u32 v28, s63, v28")
    p(f"s_mul_i32 s{S_T0}, s{S_CH}, {U_CH}")
    p(f"s_add_u32 s{S_T0}, s{S_T0}, {L_U + 512}")
    p(f"v_add_u32 v29, s{S_T0}, v28")
    p(f"s_lshl_b32 s{S_T0}, s{S_CH}, 12")
    p(f"s_add_u32 s{S_T0}, s{S_T0}, {L_X}")
    p(f"v_add_u32 v30, s{S_T0}, v28")
    p("ds_read_b64 v[44:45], v29")
    p("ds_read_b64 v[46:47], v29 offset:512")
    p("ds_read_b64 v[48:49], v30")
    p("ds_read_b64 v[50:51], v30 offset:512")
    p(f"s_lshl_b32 s{S_T0}, s{S_D}, 12")
    p(f"s_add_u32 s{S_T0}, s{S_T0}, {WS_HT}")
    p(f"v_add_u32 v28, s{S_T0}, v28")
    p("s_waitcnt lgkmcnt(0)")
    for q in range(4):
        p(f"v_lshlrev_b32 v{112+2*q}, 16, v{44+q}")
        p(f"v_and_b32 v{113+2*q}, 0xffff0000, v{44+q}")
        p(f"v_lshlrev_b32 v{120+2*q}, 16, v{48+q}")
        p(f"v_and_b32 v{121+2*q}, 0xffff0000, v{48+q}")
    for q in range(8): p(f"v_mul_f32 v{112+q}, s{S_DSK}, v{112+q}")
    for q in range(4): p(f"v_cvt_pk_bf16_f32 v{44+q}, v{112+2*q}, v{113+2*q}")
    for q in range(4):
        p(f"v_lshlrev_b32 v{112+2*q}, 16, v{44+q}")
        p(f"v_and_b32 v{113+2*q}, 0xffff0000, v{44+q}")
    p("s_barrier")
    for t in range(2):
        for src_ in range(4):
            r = 64 + (t * 4 + src_) * 4
            p(f"ds_read_b128 v[{r}:{r+3}], v27 offset:{L_PX + src_*8192 + t*1024}")
    p(f"s_or_b32 s63, s2, s{S_W}")
    p("s_cmp_lg_u32 s63, 0")
    p("s_cbranch_scc1 L_k1_nobump")
    p("v_mov_b32 v100, 0")
    p(f"v_mov_b32 v101, s{S_TAG}")
    p(f"global_store_dword v100, v101, {sp(P_WS)} offset:{WS_EPOCH} sc1")
    p.raw("L_k1_nobump:")
    p("s_waitcnt lgkmcnt(0)")
    for st in ((0, 4), (8, 12), (0, 8)):
        for t in range(2):
            for q in range(2):
                x = 64 + 16 * t + st[0] + 2 * q; y = 64 + 16 * t + st[1] + 2 * q
                p(f"v_pk_add_f32 v[{x}:{x+1}], v[{x}:{x+1}], v[{y}:{y+1}]")
    ys = [64, 66, 80, 82]
    for q in range(4): p(f"v_cvt_pk_bf16_f32 v{100+q}, v{ys[q]}, v{ys[q]+1}")
    for q in range(4):
        p(f"v_lshlrev_b32 v{104+2*q}, 16, v{100+q}")
        p(f"v_and_b32 v{105+2*q}, 0xffff0000, v{100+q}")
    for q in range(4): p(f"v_pk_add_f32 v[{104+2*q}:{105+2*q}], v[{104+2*q}:{105+2*q}], v[{112+2*q}:{113+2*q}]")
    for q in range(4): p(f"v_cvt_pk_bf16_f32 v{100+q}, v{104+2*q}, v{105+2*q}")
    for q in range(4):
        p(f"v_lshlrev_b32 v{104+2*q}, 16, v{100+q}")
        p(f"v_and_b32 v{105+2*q}, 0xffff0000, v{100+q}")
    for q in range(4): p(f"v_pk_add_f32 v[{104+2*q}:{105+2*q}], v[{104+2*q}:{105+2*q}], v[{120+2*q}:{121+2*q}]")
    for q in range(4): p(f"v_cvt_pk_bf16_f32 v{100+q}, v{104+2*q}, v{105+2*q}")
    p(f"global_store_dwordx2 v28, v[100:101], {sp(P_WS)} sc1")
    p(f"global_store_dwordx2 v28, v[102:103], {sp(P_WS)} offset:512 sc1")
    ts(p, 7, 0)
    ts_flush(p, 0, P_WS, S_W)
    p("s_endpgm")

    p.raw("L_k1_aux:")
    S_A = 51
    p(f"s_and_b32 s{S_T0}, s2, 7")
    p(f"s_lshl_b32 s{S_A}, s{S_T0}, 2")
    p(f"s_add_u32 s{S_A}, s{S_A}, s{S_T1}")
    p(f"s_sub_u32 s{S_A}, s{S_A}, 28")
    assert all(((t * 1171) >> 16) == t // 56 for t in range(512))
    p("v_mul_u32_u24 v6, 1171, v0")
    p("v_lshrrev_b32 v6, 16, v6")
    p("v_mul_u32_u24 v7, 56, v6")
    p("v_sub_u32 v7, v0, v7")
    p("v_min_u32 v6, 7, v6")
    p("v_cmp_lt_u32 vcc, 27, v7")
    p("v_subrev_u32 v8, 28, v7")
    p("v_cndmask_b32 v8, v7, v8, vcc")
    p(f"v_mov_b32 v10, s{P_WG}")
    p(f"v_mov_b32 v11, s{P_WG+1}")
    p(f"v_mov_b32 v12, s{P_WU}")
    p(f"v_mov_b32 v13, s{P_WU+1}")
    p("v_cndmask_b32 v10, v10, v12, vcc")
    p("v_cndmask_b32 v11, v11, v13, vcc")
    p(f"s_and_b32 s{S_T0}, s{S_A}, 3")
    p(f"s_mul_i32 s{S_T1}, s{S_T0}, {112*3584}")
    p(f"s_lshr_b32 s{S_T2}, s{S_A}, 2")
    p(f"s_mul_i32 s66, s{S_T2}, 448")
    p(f"s_add_u32 s{S_T1}, s{S_T1}, s66")
    p(f"v_mul_u32_u24 v9, {14*3584}, v6")
    p("v_lshl_add_u32 v9, v8, 4, v9")
    p(f"v_add_u32 v9, s{S_T1}, v9")
    p("v_add_co_u32 v10, vcc, v10, v9")
    p("v_addc_co_u32 v11, vcc, 0, v11, vcc")
    for i in range(14):
        p(f"global_load_dwordx4 v[{104+4*i}:{107+4*i}], v[10:11], off")
        if i < 13:
            p("v_add_co_u32 v10, vcc, 3584, v10")
            p("v_addc_co_u32 v11, vcc, 0, v11, vcc")
    p("s_getpc_b64 s[60:61]")
    p.raw("L_k1_pc1:")
    p("s_add_u32 s60, s60, k1_code_end-L_k1_pc1")
    p("s_addc_u32 s61, s61, 0")
    p("v_lshlrev_b32 v1, 7, v0")
    p("v_min_u32 v1, all_code_end-k1_code_end-4, v1")
    p("global_load_dword v100, v1, s[60:61]")
    for i in range(14):
        p(f"s_waitcnt vmcnt({13-i+1})")
        for k in range(4):
            d = 16 if i == 0 else 24
            p(f"v_lshlrev_b32 v{d+2*k}, 16, v{104+4*i+k}")
            p(f"v_and_b32 v{d+1+2*k}, 0xffff0000, v{104+4*i+k}")
            if i: p(f"v_pk_add_f32 v[{16+2*k}:{17+2*k}], v[{16+2*k}:{17+2*k}], v[{24+2*k}:{25+2*k}]")
    L_CS = 57344
    p("v_lshlrev_b32 v7, 5, v0")
    p(f"v_add_u32 v7, {L_CS}, v7")
    p("ds_write_b128 v7, v[16:19]")
    p("ds_write_b128 v7, v[20:23] offset:16")
    p("s_waitcnt vmcnt(0) lgkmcnt(0)")
    p("s_barrier")
    p("v_lshlrev_b32 v103, 2, v0")
    p(f"v_add_u32 v7, {L_CS}, v103")
    for i in range(8): p(f"ds_read_b32 v{48+i}, v7 offset:{1792*i}")
    p("v_cmp_lt_u32 vcc, 223, v0")
    p(f"v_mov_b32 v14, {7168 - 896}")
    p("v_cndmask_b32 v14, 0, v14, vcc")
    p(f"s_mul_i32 s68, s{S_T0}, 14336")
    p(f"s_mul_i32 s69, s{S_T2}, 896")
    p("s_add_u32 s68, s68, s69")
    p(f"s_add_u32 s68, s68, {WS_PCS}")
    p("v_add3_u32 v103, v103, v14, s68")
    p("s_waitcnt lgkmcnt(0)")
    for i in range(1, 4): p(f"v_pk_add_f32 v[48:49], v[48:49], v[{48+2*i}:{49+2*i}]")
    p("v_add_f32 v8, v48, v49")
    p(f"s_cmp_ge_u32 s{S_W}, 7")
    p("s_cbranch_scc1 L_k1_nocs")
    p(f"global_store_dword v103, v8, {sp(P_WS)}")
    p.raw("L_k1_nocs:")
    p.raw("L_k1_auxdone:")
    ts(p, 7, 0)
    ts_flush(p, 0, P_WS, S_W)
    p.raw(f"L_{name}_exit:")
    p("s_endpgm")
    tab = gather_table()
    p.raw(".p2align 4\n.type k1_gtab,@object\nk1_gtab:")
    for i in range(0, len(tab), 8):
        p.raw(".short " + ", ".join(str(v) for v in tab[i:i+8]))
    p.raw(f".size k1_gtab, {2*len(tab)}")
    p.raw("k1_code_end:")

def main():
    hdr = open(f"cdna_kernels/{NAME}.s.ref").read().split("; Override launch")[0]
    launches = [("k1_kernel", 256, 512, L_K1_END)]
    try:
        import gen23
        launches += gen23.launches()
    except ImportError:
        gen23 = None
    extra = int(sys.argv[sys.argv.index("--extra") + 1]) if "--extra" in sys.argv else 0
    launches += [("e_kernel", 256, 64, 0)] * extra
    out = hdr
    for k, g, b, l in launches:
        out += f"; @launch kernel={k} grid=({g},1,1) block=({b},1,1) lds={l}\n"
    out += '.amdgcn_target "amdgcn-amd-amdhsa--gfx950"\n.text\n'
    p = Prog(); gen_k1(p); out += p.render()
    kds = kd("k1_kernel", 256, 102)
    if gen23:
        t, k = gen23.gen(); out += t; kds += k
    out += "all_code_end:\n"
    if extra:
        out += ".globl e_kernel\n.p2align 8\n.type e_kernel,@function\ne_kernel:\n    s_endpgm\n"
        kds += kd("e_kernel", 8, 8)
    out += '.section .rodata,"a"\n' + kds
    dst = sys.argv[1] if len(sys.argv) > 1 and not sys.argv[1].startswith("--") else f"cdna_kernels/{NAME}.s"
    open(dst, "w").write(out)
    print("wrote", dst, len(out), "bytes; K1 LDS", L_K1_END)

if __name__ == "__main__":
    main()
```

```python
import sys
from asmgen import *
import gen as G
from gen import *

NST = 6
STAGES = "--stages" in sys.argv
if STAGES:
    def ts(p, slot, kern, sreg=96): pass
STG = 16384 + 8192
WPOS = [2 * STG + 4096 * i for i in range(18)] + [5 * STG + 4096 * i for i in range(6)] + [4096 * i for i in range(4)]
L2_CS = NST * STG
L2_ST = L2_CS + 512
L2_END = L2_ST + 2048
assert L2_END <= 163840

def gen_k2(p):
    name = "k2_kernel"
    prologue(p, name, 256)
    S_W, S_FS, S_RB, S_T0, S_T1, S_T2, S_LV, S_TAG, S_A, S_B = 48, 49, 50, 51, 52, 53, 54, 55, 72, 73
    p("v_lshrrev_b32 v1, 6, v0")
    p("v_and_b32 v2, 63, v0")
    p(f"v_readfirstlane_b32 s{S_W}, v1")
    p(f"s_and_b32 s{S_RB}, s2, 7")
    p(f"s_lshr_b32 s{S_FS}, s2, 3")
    p("s_waitcnt lgkmcnt(0)")
    p(f"s_load_dword s{S_TAG}, {sp(P_WS)}, {WS_EPOCH}")
    for base, ptr, n in ((56, P_WS, WS_SIZE), (60, P_WG, 448 * 3584), (64, P_WU, 448 * 3584)):
        p(f"s_mov_b32 s{base}, s{ptr}\ns_mov_b32 s{base+1}, s{ptr+1}\ns_mov_b32 s{base+2}, {n}\ns_mov_b32 s{base+3}, 0x00020000")
    ts(p, 0, 1)
    if "--dbgtime" in sys.argv:
        p(f"s_load_dword s99, {sp(P_WS)}, 64")
        p("s_memrealtime s[96:97]")
        p("s_waitcnt lgkmcnt(0)")
        p("s_sub_u32 s98, s96, s99")
    p(f"s_cmp_ge_u32 s{S_FS}, 28")
    p("s_cbranch_scc1 L_k2_aux")
    p(f"s_lshr_b32 s{S_T0}, s{S_FS}, 2")
    p(f"s_mul_i32 s{S_A}, s{S_T0}, {4*57344}")
    p(f"s_add_u32 s{S_A}, s{S_A}, {WS_WDF}")
    p(f"s_and_b32 s{S_T0}, s{S_FS}, 3")
    p(f"s_lshl_b32 s{S_T1}, s{S_RB}, 2")
    p(f"s_add_u32 s{S_T0}, s{S_T0}, s{S_T1}")
    p(f"s_mul_i32 s{S_B}, s{S_T0}, {4*57344}")
    p(f"s_add_u32 s{S_B}, s{S_B}, {WS_HMF}")
    p(f"s_mul_i32 s{S_T0}, s{S_W}, 7168")
    p(f"v_lshl_add_u32 v3, v2, 4, s{S_T0}")
    WD = 8
    def wd_loads(lo=0, hi=28):
        for ks in range(7):
            for j in range(4):
                if not lo <= ks * 4 + j < hi: continue
                r = WD + (ks * 4 + j) * 4
                p(f"s_add_u32 s{S_T0}, s{S_A}, {j*57344 + ks*1024}")
                p(f"buffer_load_dwordx4 v[{r}:{r+3}], v3, s[56:59], s{S_T0} offen")
    p(f"s_cmp_ge_u32 s{S_W}, 4")
    p("s_cbranch_scc1 L_k2_load")
    FR = [8, 56]
    AH = 104
    AW = 116
    ACC = 128
    p("v_lshrrev_b32 v6, 2, v2")
    p("v_and_b32 v5, 3, v2")
    p("v_and_b32 v7, 7, v6")
    for t in range(4):
        p(f"s_lshl_b32 s{S_T0}, s{S_W}, 2")
        p(f"s_add_u32 s{S_T0}, s{S_T0}, {t}")
        p(f"v_xor_b32 v4, s{S_T0}, v7")
        p("v_lshlrev_b32 v4, 5, v4")
        p("v_lshl_add_u32 v4, v6, 9, v4")
        p(f"v_lshl_add_u32 v{AH+t}, v5, 3, v4")
        for b in (1, 2): p(f"v_add_u32 v{AH+4*b+t}, {2*STG*b}, v{AH+t}")
    p("v_bfe_u32 v7, v6, 1, 2")
    for j in range(4):
        p(f"v_xor_b32 v4, {j}, v7")
        p("v_lshlrev_b32 v4, 5, v4")
        p("v_lshl_add_u32 v4, v6, 7, v4")
        p("v_lshl_add_u32 v4, v5, 3, v4")
        p(f"v_add_u32 v{AW+j}, 16384, v4")
        for b in (1, 2): p(f"v_add_u32 v{AW+4*b+j}, {2*STG*b}, v{AW+j}")
    def reads(s):
        st = s % NST; b = st // 2; o = (st % 2) * STG
        fr = FR[s & 1]
        out = []
        for t in range(4):
            r = fr + 32 + 4 * t
            out.append(f"ds_read_b64_tr_b16 v[{r}:{r+1}], v{AH+4*b+t} offset:{o}")
            out.append(f"ds_read_b64_tr_b16 v[{r+2}:{r+3}], v{AH+4*b+t} offset:{o+8192}")
        for j in range(8):
            r = fr + 4 * j
            oo = o + (j >> 2) * 4096
            out.append(f"ds_read_b64_tr_b16 v[{r}:{r+1}], v{AW+4*b+(j&3)} offset:{oo}")
            out.append(f"ds_read_b64_tr_b16 v[{r+2}:{r+3}], v{AW+4*b+(j&3)} offset:{oo+2048}")
        return out
    p("s_barrier")
    if STAGES: tsc(p, 0)
    ts(p, 1, 1)
    if not STAGES: tsc(p, 12)
    for x in reads(0): p(x)
    p("s_waitcnt lgkmcnt(0)")
    for s in range(14):
        pend = []
        p("s_barrier")
        if STAGES: tsc(p, s + 1)
        if s < 13: pend = reads(s + 1)
        else:
            p("v_lshrrev_b32 v4, 4, v2")
            p("v_lshlrev_b32 v4, 4, v4")
            p(f"v_add_u32 v4, {L2_CS}, v4")
            p("v_and_b32 v5, 15, v2")
            p(f"s_lshl_b32 s{S_T0}, s{S_W}, 9")
            p(f"s_add_u32 s{S_T0}, s{S_T0}, {L2_ST}")
            p(f"v_lshl_add_u32 v5, v5, 3, s{S_T0}")
            pend = [f"ds_read_b128 v[{8+4*j}:{11+4*j}], v4 offset:{64*j}" for j in range(8)]
            pend += [f"ds_read_b64 v[{40+2*t}:{41+2*t}], v5 offset:{128*t}" for t in range(4)]
        fr = FR[s & 1]
        order = [(j, t) for j in range(8) for t in range(4)]
        if s == 13: order = [(j, t) for t in range(4) for J in range(2) for j in (2 * J, 2 * J + 1, 4 + 2 * J, 5 + 2 * J)]
        for (j, t) in order:
            d = ACC + (j * 4 + t) * 4
            p(f"v_mfma_f32_16x16x32_bf16 {vr(d,4)}, {vr(fr+4*j,4)}, {vr(fr+32+4*t,4)}, {'0' if s == 0 else vr(d,4)}")
            if pend: p(pend.pop(0))
        p("s_waitcnt lgkmcnt(0)")
    ts(p, 2, 1)
    if not STAGES: tsc(p, 13)
    p(f"s_lshl_b32 s{S_T0}, s{S_RB}, 4")
    p(f"s_lshl_b32 s{S_T1}, s{S_W}, 2")
    p(f"s_add_u32 s{S_T0}, s{S_T0}, s{S_T1}")
    p(f"s_mul_i32 s{S_T0}, s{S_T0}, {56*1024}")
    p(f"s_lshl_b32 s{S_T1}, s{S_FS}, 11")
    p(f"s_add_u32 s{S_T0}, s{S_T0}, s{S_T1}")
    p(f"s_add_u32 s{S_T0}, s{S_T0}, {WS_HMF}")
    p("v_lshlrev_b32 v4, 4, v2")
    for t in range(4):
        for J in range(2):
            o = 48 + 4 * ((t * 2 + J) % 4)
            for jj in range(2):
                j = 2 * J + jj
                g = ACC + (j * 4 + t) * 4; u = ACC + ((4 + j) * 4 + t) * 4
                for q in range(2):
                    p(f"v_pk_fma_f32 v[{g+2*q}:{g+2*q+1}], v[{8+4*j+2*q}:{8+4*j+2*q+1}], v[{40+2*t}:{41+2*t}], v[{g+2*q}:{g+2*q+1}] op_sel:[0,0,0] op_sel_hi:[1,0,1]")
                    p(f"v_pk_fma_f32 v[{u+2*q}:{u+2*q+1}], v[{24+4*j+2*q}:{24+4*j+2*q+1}], v[{40+2*t}:{41+2*t}], v[{u+2*q}:{u+2*q+1}] op_sel:[0,0,0] op_sel_hi:[1,0,1]")
            for jj in range(2):
                g = ACC + ((2 * J + jj) * 4 + t) * 4
                for r in range(4): p(f"v_max_f32 v{g+r}, 0, v{g+r}")
            for jj in range(2):
                j = 2 * J + jj
                g = ACC + (j * 4 + t) * 4; u = ACC + ((4 + j) * 4 + t) * 4
                for q in range(2):
                    p(f"v_pk_mul_f32 v[{g+2*q}:{g+2*q+1}], v[{g+2*q}:{g+2*q+1}], v[{u+2*q}:{u+2*q+1}]")
            for jj in range(2):
                g = ACC + ((2 * J + jj) * 4 + t) * 4
                p(f"v_cvt_pk_bf16_f32 v{o+2*jj}, v{g}, v{g+1}")
                p(f"v_cvt_pk_bf16_f32 v{o+2*jj+1}, v{g+2}, v{g+3}")
            p(f"s_add_u32 s{S_T1}, s{S_T0}, {t*56*1024 + J*1024}")
            p(f"buffer_store_dwordx4 v[{o}:{o+3}], v4, s[56:59], s{S_T1} offen sc1")
    ts(p, 3, 1)
    p("s_waitcnt vmcnt(0)")
    p(f"s_lshl_b32 s{S_T0}, s{S_W}, 10")
    p(f"v_lshl_add_u32 v4, v2, 4, s{S_T0}")
    p("v_add_u32 v5, 65536, v4")
    p("v_add_u32 v6, 131072, v4")
    p("s_barrier")
    for i in range(28):
        p(f"ds_read_b128 v[{WD+4*i}:{WD+4*i+3}], v{4 + WPOS[i] // 65536} offset:{WPOS[i] % 65536}")
    p("s_branch L_k2_sync")

    p.raw("L_k2_load:")
    p(f"s_sub_u32 s{S_LV}, s{S_W}, 4")
    p("v_lshrrev_b32 v4, 5, v2")
    p("v_bfe_u32 v5, v2, 1, 4")
    p("v_and_b32 v6, 1, v2")
    p(f"s_lshl_b32 s{S_T0}, s{S_LV}, 15")
    p(f"s_lshl_b32 s{S_T1}, s{S_RB}, 9")
    p(f"s_add_u32 s{S_T0}, s{S_T0}, s{S_T1}")
    p(f"s_add_u32 s{S_T0}, s{S_T0}, {WS_HT}")
    for i in range(4):
        p(f"v_add_u32 v7, {2*i}, v4")
        p("v_xor_b32 v125, v7, v5")
        p("v_lshlrev_b32 v125, 5, v125")
        p("v_lshl_add_u32 v125, v6, 4, v125")
        p("v_lshl_add_u32 v125, v7, 12, v125")
        p(f"v_add_u32 v{120+i}, s{S_T0}, v125")
    p("v_lshrrev_b32 v4, 3, v2")
    p("v_bfe_u32 v5, v2, 1, 2")
    p("v_lshrrev_b32 v7, 1, v4")
    p("v_xor_b32 v5, v5, v7")
    p("v_lshlrev_b32 v5, 5, v5")
    p("v_lshl_add_u32 v5, v6, 4, v5")
    p("v_mul_u32_u24 v4, 3584, v4")
    p(f"s_mul_i32 s{S_T0}, s{S_LV}, {8*3584}")
    p(f"s_lshl_b32 s{S_T1}, s{S_FS}, 7")
    p(f"s_add_u32 s{S_T0}, s{S_T0}, s{S_T1}")
    p(f"v_add3_u32 v124, v4, v5, s{S_T0}")
    p(f"s_lshl_b32 s74, s{S_LV}, 12")
    p(f"s_lshl_b32 s75, s{S_LV}, 10")
    def dma(s):
        st = (s % NST) * STG
        p(f"s_mov_b32 s{S_T1}, {s*32*3584}")
        p(f"s_add_u32 m0, s75, {st + 16384}")
        p(f"buffer_load_dwordx4 v124, s[60:63], s{S_T1} offen lds")
        p(f"s_add_u32 m0, s75, {st + 16384 + 4096}")
        p(f"buffer_load_dwordx4 v124, s[64:67], s{S_T1} offen lds")
        p(f"s_mov_b32 s{S_T1}, {s*32*4096}")
        for i in range(4):
            p(f"s_add_u32 m0, s74, {st + 1024*i}")
            p(f"buffer_load_dwordx4 v{120+i}, s[56:59], s{S_T1} offen lds")
    p(f"s_mul_i32 s76, s{S_LV}, 7168")
    p("v_lshl_add_u32 v127, v2, 4, s76")
    def wdl_addr(lv_stride_idx, i):
        return None
    def wdl(lo, hi):
        for i in range(lo, hi):
            ks, j = divmod(i, 4)
            p(f"s_add_u32 s{S_T0}, s{S_A}, {j*57344 + ks*1024}")
            p(f"s_add_u32 m0, s75, {WPOS[i]}")
            p(f"buffer_load_dwordx4 v127, s[56:59], s{S_T0} offen lds")
    issued = 3
    for s in range(issued): dma(s)
    ts(p, 1, 1)
    for s in range(11):
        p(f"s_waitcnt vmcnt({6*(issued - s - 1)})")
        if STAGES: tsc(p, s)
        p("s_barrier")
        dma(issued); issued += 1
    assert issued == 14
    p(f"s_cmp_eq_u32 s{S_LV}, 1")
    p("s_cbranch_scc1 L_k2_x1")
    p("v_cmp_lt_u32 vcc, 31, v2")
    p(f"v_mov_b32 v126, {7168 - 256}")
    p("v_cndmask_b32 v126, 0, v126, vcc")
    p("v_lshl_add_u32 v126, v2, 3, v126")
    p(f"s_lshl_b32 s{S_T1}, s{S_FS}, 8")
    p(f"s_add_u32 s{S_T1}, s{S_T1}, {WS_PCS}")
    p(f"v_add_u32 v126, s{S_T1}, v126")
    for i in range(4):
        p(f"s_mov_b32 s{S_T1}, {i*14336}")
        p(f"buffer_load_dwordx2 v[{128+2*i}:{129+2*i}], v126, s[56:59], s{S_T1} offen")
    p("s_branch L_k2_x2")
    p.raw("L_k2_x1:")
    p(f"s_lshl_b32 s{S_T1}, s{S_RB}, 11")
    p(f"s_add_u32 s{S_T1}, s{S_T1}, {WS_ST2}")
    p(f"v_lshl_add_u32 v126, v2, 3, s{S_T1}")
    for i in range(4):
        p(f"buffer_load_dwordx2 v[{128+2*i}:{129+2*i}], v126, s[56:59], 0 offen offset:{512*i} sc1")
    p.raw("L_k2_x2:")
    nwd = 0
    for s in range(11, 14):
        p(f"s_waitcnt vmcnt({6*(13-s) + 4 + nwd})")
        p("s_barrier")
        if STAGES: tsc(p, s)
        wdl(nwd, nwd + 6); nwd += 6
    p(f"s_waitcnt vmcnt({nwd}) lgkmcnt(0)")
    p(f"s_cmp_eq_u32 s{S_LV}, 1")
    p("s_cbranch_scc1 L_k2_y1")
    p(f"s_cmp_lg_u32 s{S_LV}, 0")
    p("s_cbranch_scc1 L_k2_y2")
    p("v_pk_add_f32 v[128:129], v[128:129], v[130:131]")
    p("v_pk_add_f32 v[132:133], v[132:133], v[134:135]")
    p("v_pk_add_f32 v[128:129], v[128:129], v[132:133]")
    p("v_lshlrev_b32 v126, 3, v2")
    p(f"v_add_u32 v126, {L2_CS}, v126")
    p("ds_write_b64 v126, v[128:129]")
    p("s_branch L_k2_y2")
    p.raw("L_k2_y1:")
    p(f"v_xor_b32 v136, s{S_TAG}, v129")
    for r in (131, 133, 135):
        p(f"v_xor_b32 v137, s{S_TAG}, v{r}")
        p("v_or_b32 v136, v136, v137")
    p("v_cmp_ne_u32 vcc, 0, v136")
    p("s_cbranch_vccz L_k2_y1ok")
    for i in range(4):
        p(f"buffer_load_dwordx2 v[{128+2*i}:{129+2*i}], v126, s[56:59], 0 offen offset:{512*i} sc1")
    p("s_waitcnt vmcnt(0)")
    p("s_branch L_k2_y1")
    p.raw("L_k2_y1ok:")
    p("v_lshlrev_b32 v126, 3, v2")
    p(f"v_add_u32 v126, {L2_ST}, v126")
    for i in range(4):
        r = 128 + 2 * i
        p(f"v_and_b32 v{r+1}, 0xffff0000, v{r}")
        p(f"v_mul_f32 v{r+1}, v{r+1}, v{r+1}")
        p(f"v_rcp_f32 v{r+1}, v{r+1}")
        p(f"v_lshlrev_b32 v{r}, 16, v{r}")
        p(f"v_xor_b32 v{r}, 0x80000000, v{r}")
        p(f"ds_write_b64 v126, v[{r}:{r+1}] offset:{512*i}")
    p.raw("L_k2_y2:")
    p("s_waitcnt lgkmcnt(0)")
    p("s_barrier")
    wdl(nwd, 28)
    wd_loads()
    p("s_waitcnt vmcnt(28)")
    ts(p, 3, 1)

    p("s_barrier")
    p.raw("L_k2_sync:")
    ts(p, 4, 1)
    p("v_and_b32 v4, 15, v2")
    p("v_lshrrev_b32 v5, 4, v2")
    p(f"s_lshr_b32 s{S_T0}, s{S_W}, 1")
    p(f"s_lshl_b32 s{S_T0}, s{S_T0}, 4")
    p(f"s_lshr_b32 s{S_T1}, s{S_FS}, 2")
    p(f"s_lshl_b32 s{S_T1}, s{S_T1}, 6")
    p(f"s_add_u32 s68, s{S_T0}, s{S_T1}")
    p(f"s_and_b32 s{S_T0}, s{S_W}, 1")
    p(f"s_lshl_b32 s{S_T0}, s{S_T0}, 5")
    p(f"s_and_b32 s{S_T1}, s{S_FS}, 3")
    p(f"s_lshl_b32 s{S_T1}, s{S_T1}, 6")
    p(f"s_add_u32 s69, s{S_T0}, s{S_T1}")
    p(f"s_cmp_lg_u32 s{S_W}, 7")
    p("s_cbranch_scc1 L_k2_nopoll")
    p(f"s_lshl_b32 s{S_T0}, s{S_RB}, 12")
    p(f"s_add_u32 s{S_T0}, s{S_T0}, {WS_FLG}")
    p(f"s_lshl_b32 s{S_T1}, s{S_FS}, 7")
    p(f"s_add_u32 s{S_T1}, s{S_T1}, s{S_T0}")
    p(f"v_mov_b32 v120, s{S_T1}")
    p(f"v_mov_b32 v121, s{S_TAG}")
    p("s_mov_b64 exec, 1")
    p("buffer_store_dword v121, v120, s[56:59], 0 offen sc1")
    p("s_mov_b64 exec, -1")
    p("v_min_u32 v120, 27, v2")
    p(f"v_lshl_add_u32 v120, v120, 7, s{S_T0}")
    p.raw("L_k2_poll:")
    p("buffer_load_dword v122, v120, s[56:59], 0 offen sc1")
    p("s_waitcnt vmcnt(0)")
    p("v_cmp_ne_u32 vcc, v121, v122")
    p("s_cbranch_vccnz L_k2_poll")
    p.raw("L_k2_nopoll:")
    p("v_add_u32 v6, s69, v4")
    p("v_lshl_add_u32 v7, v5, 2, s68")
    p(f"s_lshl_b32 s{S_T0}, s{S_RB}, 8")
    p(f"v_add_u32 v120, s{S_T0}, v6")
    p("v_lshlrev_b32 v121, 12, v7")
    p("v_lshl_add_u32 v121, v120, 1, v121")
    p(f"v_add_u32 v121, {WS_HT}, v121")
    p("v_mul_u32_u24 v122, 896, v120")
    p("v_lshl_add_u32 v122, v7, 1, v122")
    p("v_lshlrev_b32 v6, 3, v6")
    p(f"v_add_u32 v6, {L2_ST + 4}, v6")
    p("ds_read_b32 v123, v6")
    p("ds_read_b32 v124, v6 offset:128")
    p("s_waitcnt lgkmcnt(0)")
    p("s_barrier")
    ts(p, 5, 1)
    if not STAGES: tsc(p, 14)
    HM = 128; NSET = 4
    AC2 = 192
    def hm_loads(ks):
        for t in range(4):
            r = HM + (ks % NSET) * 16 + 4 * t
            p(f"s_add_u32 s{S_T0}, s{S_B}, {t*57344 + ks*1024}")
            p(f"buffer_load_dwordx4 v[{r}:{r+3}], v3, s[56:59], s{S_T0} offen sc1")
    for ks in range(NSET): hm_loads(ks)
    issued = NSET
    for ks in range(7):
        p(f"s_waitcnt vmcnt({4*(issued-ks-1)})")
        for j in range(4):
            for t in range(4):
                d = AC2 + (j * 4 + t) * 4
                p(f"v_mfma_f32_16x16x32_bf16 {vr(d,4)}, {vr(WD+(ks*4+j)*4,4)}, {vr(HM+(ks%NSET)*16+4*t,4)}, {'0' if ks == 0 else vr(d,4)}")
        if issued < 7:
            hm_loads(issued); issued += 1
    ts(p, 6, 1)
    for t in range(2):
        for r in range(4):
            p(f"s_mov_b32 s{S_T0}, {4096*r + 32*t}")
            p(f"buffer_load_ushort v{16+4*t+r}, v121, s[56:59], s{S_T0} offen")
    p(f"s_lshl_b32 s{S_T0}, s{S_W}, 14")
    p(f"v_lshl_add_u32 v10, v2, 4, s{S_T0}")
    for i in range(16):
        p(f"ds_write_b128 v10, v[{AC2+4*i}:{AC2+4*i+3}] offset:{1024*i}")
    p(f"s_lshl_b32 s{S_T0}, s{S_W}, 11")
    p(f"v_lshl_add_u32 v11, v2, 4, s{S_T0}")
    p("v_add_u32 v12, 65536, v11")
    p("s_waitcnt lgkmcnt(0)")
    p("s_barrier")
    for t in range(2):
        for src in range(8):
            r = 32 + (t * 8 + src) * 4
            p(f"ds_read_b128 v[{r}:{r+3}], v{11 + src // 4} offset:{(src % 4) * 16384 + t * 1024}")
    for t in range(2):
        p(f"s_waitcnt lgkmcnt({8*(1-t)})")
        b = 32 + t * 32
        for st in (4, 2, 1):
            for i in range(st):
                for q in range(2):
                    x = b + 4 * i + 2 * q; y = b + 4 * (i + st) + 2 * q
                    p(f"v_pk_add_f32 v[{x}:{x+1}], v[{x}:{x+1}], v[{y}:{y+1}]")
        if t == 0: p("s_waitcnt vmcnt(0)")
        for r in range(4): p(f"v_mul_f32 v{b+r}, v{123+t}, v{b+r}")
        p(f"v_cvt_pk_bf16_f32 v{b+4}, v{b}, v{b+1}")
        p(f"v_cvt_pk_bf16_f32 v{b+5}, v{b+2}, v{b+3}")
        for r in range(4):
            src = b + 4 + r // 2
            p(f"v_lshlrev_b32 v{b+r}, 16, v{src}" if r % 2 == 0 else f"v_and_b32 v{b+r}, 0xffff0000, v{src}")
            p(f"v_lshlrev_b32 v{16+4*t+r}, 16, v{16+4*t+r}")
            p(f"v_add_f32 v{b+r}, v{b+r}, v{16+4*t+r}")
        p(f"v_cvt_pk_bf16_f32 v{b+4}, v{b}, v{b+1}")
        p(f"v_cvt_pk_bf16_f32 v{b+5}, v{b+2}, v{b+3}")
        if t == 1: p(f"v_add_u32 v122, {16*896}, v122")
        p(f"global_store_dwordx2 v122, v[{b+4}:{b+5}], {sp(P_OUT)}")
    ts(p, 7, 1)
    if not STAGES: tsc(p, 15)
    if "--dbgtime" in sys.argv:
        p("s_memrealtime s[96:97]")
        p("s_waitcnt lgkmcnt(0)")
        p("s_sub_u32 s96, s96, s99")
        p("v_mov_b32 v0, 0")
        p("v_mov_b32 v1, s96")
        p("v_mov_b32 v2, s98")
        p("s_mov_b64 exec, 1")
        p(f"global_atomic_umax v0, v1, {sp(P_DBG)}")
        p(f"global_atomic_umax v0, v2, {sp(P_DBG)} offset:4")
    ts_flush(p, 1, P_WS, S_W)
    p("s_endpgm")

    p.raw("L_k2_aux:")
    p(f"s_sub_u32 s{S_T0}, s{S_FS}, 28")
    p(f"s_lshl_b32 s{S_T0}, s{S_T0}, 6")
    p(f"s_lshl_b32 s{S_T1}, s{S_RB}, 8")
    p(f"s_add_u32 s{S_T2}, s{S_T0}, s{S_T1}")
    p(f"s_lshl_b32 s{S_T0}, s{S_T2}, 1")
    p(f"s_add_u32 s{S_T0}, s{S_T0}, {WS_HT}")
    p("v_and_b32 v3, 7, v0")
    p("v_lshrrev_b32 v4, 3, v0")
    p(f"v_mul_u32_u24 v5, {7*4096}, v4")
    p("v_lshl_add_u32 v5, v3, 4, v5")
    p(f"v_add_u32 v5, s{S_T0}, v5")
    for i in range(7):
        p(f"s_mov_b32 s{S_T1}, {4096*i}")
        p(f"buffer_load_dwordx4 v[{8+4*i}:{11+4*i}], v5, s[56:59], s{S_T1} offen")
    for i in range(16): p(f"v_mov_b32 v{48+i}, 0")
    for i in range(7):
        p(f"s_waitcnt vmcnt({6-i})")
        for k in range(4):
            p(f"v_lshlrev_b32 v{40+2*k}, 16, v{8+4*i+k}")
            p(f"v_and_b32 v{41+2*k}, 0xffff0000, v{8+4*i+k}")
        for k in range(4):
            p(f"v_pk_add_f32 v[{48+2*k}:{49+2*k}], v[{48+2*k}:{49+2*k}], v[{40+2*k}:{41+2*k}]")
            p(f"v_pk_fma_f32 v[{56+2*k}:{57+2*k}], v[{40+2*k}:{41+2*k}], v[{40+2*k}:{41+2*k}], v[{56+2*k}:{57+2*k}]")
    for i in range(16):
        p(f"v_add_f32_dpp v{48+i}, v{48+i}, v{48+i} row_ror:8 row_mask:0xf bank_mask:0xf")
    p("v_lshrrev_b32 v6, 4, v0")
    p("v_lshlrev_b32 v6, 9, v6")
    p("v_lshl_add_u32 v6, v3, 6, v6")
    for i in range(4): p(f"ds_write_b128 v6, v[{48+4*i}:{51+4*i}] offset:{16*i}")
    p("s_waitcnt lgkmcnt(0)")
    p("s_barrier")
    p(f"s_cmp_lg_u32 s{S_W}, 0")
    p(f"s_cbranch_scc1 L_{name}_exit")
    p("v_lshrrev_b32 v6, 3, v2")
    p("v_lshlrev_b32 v6, 6, v6")
    p("v_and_b32 v7, 7, v2")
    p("v_lshl_add_u32 v6, v7, 2, v6")
    for g in range(32):
        if g % 2 == 0 and g: p("v_add_u32 v6, 1024, v6")
        p(f"ds_read2_b32 v[{8+2*g}:{9+2*g}], v6 offset0:{(g%2)*128} offset1:{(g%2)*128+8}")
    p("s_waitcnt lgkmcnt(0)")
    for g in range(2, 32):
        a = 8 + 2 * (g & 1)
        p(f"v_pk_add_f32 v[{a}:{a+1}], v[{a}:{a+1}], v[{8+2*g}:{9+2*g}]")
    p("v_pk_add_f32 v[8:9], v[8:9], v[10:11]")
    ln_finish(p, 8, 9, 10)
    p(f"v_mov_b32 v11, s{S_TAG}")
    p(f"s_lshl_b32 s{S_T0}, s{S_T2}, 3")
    p(f"s_add_u32 s{S_T0}, s{S_T0}, {WS_ST2}")
    p(f"v_lshl_add_u32 v6, v2, 3, s{S_T0}")
    p("buffer_store_dwordx2 v[10:11], v6, s[56:59], 0 offen sc1")
    ts(p, 7, 1)
    ts_flush(p, 1, P_WS, S_W)
    p.raw(f"L_{name}_exit:")
    p("s_endpgm")

def launches(): return [("k2_kernel", 256, 512, L2_END)]
def gen():
    p = Prog(); gen_k2(p); t = p.render()
    return t, kd("k2_kernel", 256, 102)
```

```python
import sys, struct
import numpy as np
from asmgen import *

NAME = "sequential_preLN__ssm_conv_s4__glu_gated_reglu__prompt"
DIAG = "--diag" in sys.argv

WS_EPOCH = 0
WS_ST1 = 0x1000
WS_ST2 = 0x6000
WS_CS = 0xB000
WS_HT = 0x10000
WS_WDF = 0x200000
WS_HMF = 0x400000
WS_PCS = 0xB00000
WS_TS = 0xC00000
WS_XT = 0x1000000
WS_FLG = 0xB80000
WS_SIZE = 0x1400000

def f32(x): return struct.unpack("<I", struct.pack("<f", x))[0]
def hx(x): return "0x%08x" % x
LOG2E = 1.4426950408889634
L2E_HI = float(np.float32(LOG2E)); L2E_LO = float(np.float32(LOG2E - L2E_HI))

def bf16_round_int(l):
    u = np.float32(l).view(np.uint32)
    r = ((int(u) + 0x7FFF + ((int(u) >> 16) & 1)) >> 16) << 16
    return int(np.uint32(r).view(np.float32))

HI0 = [1, 2, 3, 4, 5, 6, 7, 8, 258, 260, 262, 264, 516, 520, 772, 776]
HI1 = [1032, 1288, 1544, 1800, 0]
def kacc_addr(t):
    cands = []
    for Mt, rows in ((0, HI0), (1, HI1)):
        for row, hi in enumerate(rows):
            if t >= hi and (t - hi) % 8 == 0 and (t - hi) // 8 < 32:
                q = (t - hi) // 8
                cands.append((Mt * 2 + (q >> 4)) * 1024 + (row & 3) * 256 + ((row >> 2) * 16 + (q & 15)) * 4)
    assert cands, t
    return cands[0]
def gather_table():
    tab = []
    for x in range(2048 + 8):
        tab.append(kacc_addr(bf16_round_int(2047 - x)) if x <= 2047 else 4096)
    return tab

TPITCH = 1040
TB = 55120
L_TAB = 0
L_PX = 0
L_KACC = 2 * TB
KACC_CH = 4096 + 64
L_KE = L_KACC + 2 * KACC_CH
KCOPY = 4096 + 64 + 64
KE_CH = 2 * KCOPY
L_U = L_KE + 2 * KE_CH
U_CH = 512 + 4096
L_X = L_U + 2 * U_CH
XRP = 912
L_XR = L_X + 2 * 4096
L_K1_END = L_XR + 8 * XRP + 128
assert L_KACC % 16 == 0 and L_KE % 16 == 0 and L_U % 16 == 0 and L_X % 16 == 0
assert L_K1_END <= 163840, L_K1_END
O_OFF = 4096 + 64
assert (O_OFF // 4) % 32 == 16 and O_OFF + 4096 + 64 <= KE_CH

def cmul(p, d, a, b, conj=False, tmp=None):
    t = tmp if tmp is not None else d
    p(f"v_pk_mul_f32 {vr(t,2)}, {vr(a,2)}, {vr(b,2)} op_sel:[0,0] op_sel_hi:[1,0]")
    neg = "neg_hi" if conj else "neg_lo"
    p(f"v_pk_fma_f32 {vr(d,2)}, {vr(a,2)}, {vr(b,2)}, {vr(t,2)} op_sel:[1,1,0] op_sel_hi:[0,1,1] {neg}:[1,0,0]")

def ts(p, slot, kern, sreg=96):
    if not DIAG: return
    p(f"s_memrealtime s[{sreg}:{sreg+1}]")
    p("s_waitcnt lgkmcnt(0)")
    p(f"s_mov_b32 s{80+slot}, s{sreg}")

def tsc(p, slot, sreg=96):
    if not DIAG: return
    p(f"s_memtime s[{sreg}:{sreg+1}]")
    p("s_waitcnt lgkmcnt(0)")
    p(f"s_mov_b32 s{80+slot}, s{sreg}")

def ts_init(p):
    if not DIAG: return
    for i in range(16): p(f"s_mov_b32 s{80+i}, 0")

def ts_flush(p, kern, ws_pair, wave_sreg):
    if not DIAG: return
    p("s_nop 7\ns_nop 7")
    for i in range(16): p(f"v_writelane_b32 v1, s{80+i}, {i}")
    p(f"s_lshl_b32 s96, s2, 3")
    p(f"s_add_u32 s96, s96, s{wave_sreg}")
    p(f"s_lshl_b32 s96, s96, 6")
    p(f"s_add_u32 s96, s96, {WS_TS + kern * 0x40000}")
    p(f"v_mbcnt_lo_u32_b32 v0, -1, 0")
    p(f"v_mbcnt_hi_u32_b32 v0, -1, v0")
    p(f"v_lshl_add_u32 v0, v0, 2, s96")
    p(f"s_mov_b64 exec, 0xffff")
    p(f"global_store_dword v0, v1, s[{ws_pair}:{ws_pair+1}]")
    p(f"s_mov_b64 exec, -1")

P_X, P_ARE, P_AIM, P_BRE, P_BIM, P_CRE, P_CIM, P_LDT = [16 + 2 * i for i in range(8)]
P_DSK, P_BX, P_WG, P_WU, P_WD, P_OUT, P_DBG, P_WS = [32 + 2 * i for i in range(8)]
def sp(b): return f"s[{b}:{b+1}]"

def prologue(p, name, nwg):
    p.raw(f".globl {name}\n.p2align 8\n.type {name},@function\n{name}:")
    p(f"s_cmp_ge_u32 s2, {nwg}")
    p(f"s_cbranch_scc1 L_{name}_exit")
    p("s_load_dwordx16 s[16:31], s[0:1], 0")
    p("s_load_dwordx16 s[32:47], s[0:1], 64")
    ts_init(p)

def wave_red(p, regs):
    for mod in ("quad_perm:[1,0,3,2] row_mask:0xf", "quad_perm:[2,3,0,1] row_mask:0xf", "row_half_mirror row_mask:0xf",
                "row_mirror row_mask:0xf", "row_bcast:15 row_mask:0xa", "row_bcast:31 row_mask:0xc"):
        for r in regs:
            p(f"v_add_f32_dpp v{r}, v{r}, v{r} {mod} bank_mask:0xf")

def ln_finish(p, sm, sq, dst):
    p(f"v_mul_f32 v{sm}, {hx(f32(1.0/448))}, v{sm}")
    p(f"v_mul_f32 v{sq}, {hx(f32(1.0/448))}, v{sq}")
    p(f"v_fma_f32 v{sq}, -v{sm}, v{sm}, v{sq}")
    p(f"v_max_f32 v{sq}, 0, v{sq}")
    p(f"v_cvt_pk_bf16_f32 v{sq}, v{sq}, v{sq}")
    p(f"v_lshlrev_b32 v{sq}, 16, v{sq}")
    p(f"v_add_f32 v{sq}, {hx(f32(1e-5))}, v{sq}")
    p(f"v_cvt_pk_bf16_f32 v{sq}, v{sq}, v{sq}")
    p(f"v_lshlrev_b32 v{sq}, 16, v{sq}")
    p(f"v_sqrt_f32 v{sq}, v{sq}")
    p(f"v_cvt_pk_bf16_f32 v{dst}, v{sm}, v{sq}")

def gen_k1(p):
    name = "k1_kernel"
    prologue(p, name, 256)
    S_W, S_CH, S_V, S_CP, S_D, S_TAG, S_T0, S_T1, S_T2, S_LDT, S_DSK = 48, 49, 50, 51, 52, 53, 54, 55, 56, 57, 58
    p("s_getpc_b64 s[60:61]")
    p.raw("L_k1_pc0:")
    p("v_lshrrev_b32 v1, 6, v0")
    p("v_and_b32 v2, 63, v0")
    p(f"v_readfirstlane_b32 s{S_W}, v1")
    p(f"s_and_b32 s{S_T0}, s2, 7")
    p(f"s_lshr_b32 s{S_T1}, s2, 3")
    p(f"s_min_u32 s{S_T2}, s{S_T1}, 27")
    p(f"s_mul_i32 s{S_CP}, s{S_T0}, 28")
    p(f"s_add_u32 s{S_CP}, s{S_CP}, s{S_T2}")
    p("s_lshl_b32 s62, s2, 3")
    p(f"s_add_u32 s62, s62, s{S_W}")
    p("s_mul_i32 s63, s62, 896")
    p("v_min_u32 v3, 55, v2")
    p("v_lshl_add_u32 v3, v3, 4, s63")
    p(f"s_lshl_b32 s63, s{S_CP}, 10")
    p("v_lshl_add_u32 v4, v0, 1, s63")
    p("v_lshlrev_b32 v1, 7, v0")
    p("s_waitcnt lgkmcnt(0)")
    if "--dbgtime" in sys.argv:
        p("s_memrealtime s[96:97]")
        p("s_waitcnt lgkmcnt(0)")
        p("v_mov_b32 v100, s96")
        p("v_mov_b32 v101, 0")
        p(f"s_or_b32 s98, s2, s{S_W}")
        p("s_cmp_lg_u32 s98, 0")
        p("s_cbranch_scc1 L_k1_dt")
        p(f"global_store_dword v101, v100, {sp(P_WS)} offset:64")
        p("s_waitcnt vmcnt(0)")
        p.raw("L_k1_dt:")
    VR = 16
    VP = 8
    p(f"global_load_dwordx4 v[{VR}:{VR+3}], v3, {sp(P_X)}")
    for i, ptr in enumerate((P_ARE, P_AIM, P_BRE, P_BIM, P_CRE, P_CIM)):
        p(f"global_load_ushort v{VP+i}, v4, {sp(ptr)}")
    p(f"s_load_dword s{S_TAG}, {sp(P_WS)}, {WS_EPOCH}")
    p(f"s_lshl_b32 s63, s{S_CP}, 2")
    p(f"s_add_u32 s64, s{P_LDT}, s63")
    p(f"s_addc_u32 s65, s{P_LDT+1}, 0")
    p(f"s_load_dword s{S_LDT}, s[64:65], 0")
    p(f"s_add_u32 s66, s{P_DSK}, s63")
    p(f"s_addc_u32 s67, s{P_DSK+1}, 0")
    p(f"s_load_dword s{S_DSK}, s[66:67], 0")
    p("v_min_u32 v1, k1_code_end-L_k1_pc0-4, v1")
    p("global_load_dword v25, v1, s[60:61]")
    ts(p, 0, 0)
    p(f"s_lshr_b32 s{S_CH}, s{S_W}, 2")
    p(f"s_and_b32 s{S_V}, s{S_W}, 3")
    p(f"s_lshl_b32 s{S_D}, s{S_CP}, 1")
    p(f"s_add_u32 s{S_D}, s{S_D}, s{S_CH}")
    p("s_add_u32 s60, s60, k1_gtab-L_k1_pc0")
    p("s_addc_u32 s61, s61, 0")
    p("v_and_b32 v5, 255, v0")
    p("v_lshlrev_b32 v5, 4, v5")
    VG = 20
    p(f"global_load_dwordx4 v[{VG}:{VG+3}], v5, s[60:61]")
    p(f"global_load_ushort v{VG+4}, v5, s[60:61] offset:16")
    p("v_mov_b32 v28, 0\nv_mov_b32 v29, 0\nv_mov_b32 v30, 0\nv_mov_b32 v31, 0")
    p("v_lshlrev_b32 v26, 4, v2")
    p("s_mov_b64 exec, 0xf")
    p(f"v_add_u32 v27, {L_KACC}, v26")
    for ch in range(2):
        p(f"ds_write_b128 v27, v[28:31] offset:{ch*KACC_CH + 4096}")
        for cp_off in (0, O_OFF):
            p(f"ds_write_b128 v27, v[28:31] offset:{L_KE - L_KACC + ch*KE_CH + cp_off + 4096}")
    p("s_mov_b32 exec_lo, -1")
    p(f"v_add_u32 v27, {L_KACC}, v26")
    for ch in range(2):
        p(f"ds_write_b128 v27, v[28:31] offset:{L_U - L_KACC + ch*U_CH}")
    p("s_mov_b64 exec, -1")
    p(f"s_mul_i32 s{S_T0}, s{S_CH}, {TB}")
    p(f"s_lshl_b32 s63, s{S_V}, 8")
    p(f"s_add_u32 m0, s{S_T0}, s63")
    VT = 32
    p("v_and_b32 v33, 15, v2")
    p("v_lshrrev_b32 v34, 4, v2")
    p(f"v_mul_u32_u24 v{VT}, {TPITCH}, v33")
    p(f"v_lshl_add_u32 v{VT}, v34, 8, v{VT}")
    p(f"s_and_b32 s63, s{S_V}, 1")
    p(f"s_mul_i32 s63, s63, {16*TPITCH}")
    p(f"s_add_u32 s63, s63, s{S_T0}")
    p(f"v_add_u32 v{VT+3}, s63, v{VT}")
    p(f"s_lshr_b32 s63, s{S_V}, 1")
    p(f"s_mul_i32 s63, s63, {16*TPITCH}")
    p(f"s_add_u32 s63, s63, s{S_T0}")
    p(f"s_add_u32 s63, s63, {32*TPITCH}")
    p(f"v_add_u32 v{VT}, s63, v{VT}")
    p(f"s_mul_i32 s63, s{S_W}, {XRP}")
    p(f"s_add_u32 s63, s63, {L_XR}")
    p("v_min_u32 v27, 55, v2")
    p("v_lshl_add_u32 v27, v27, 4, s63")
    p("v_and_b32 v28, 3, v0")
    p(f"v_mul_u32_u24 v28, {2*XRP}, v28")
    p("v_and_b32 v29, -4, v0")
    p(f"v_add3_u32 v28, v28, v29, {L_XR}" if False else "v_add_u32 v28, v28, v29")
    p(f"v_add_u32 v28, {L_XR}, v28")
    p("s_mul_i32 s63, s2, 14336")
    p(f"s_add_u32 s63, s63, {WS_XT}")
    p("v_lshl_add_u32 v29, v0, 4, s63")
    p("s_lshl_b32 s62, s2, 6")
    p(f"s_add_u32 s62, s62, {WS_ST1}")
    p("v_and_b32 v30, 3, v0")
    p("v_lshl_add_u32 v30, v30, 4, s62")
    p("v_lshrrev_b32 v52, 2, v0")
    p("v_mov_b32 v31, 0x3f803f80")
    p("v_cmp_gt_u32 vcc, 56, v2")
    p("s_waitcnt lgkmcnt(0)")
    p(f"s_add_u32 s{S_TAG}, s{S_TAG}, 2")
    p(f"s_or_b32 s{S_TAG}, s{S_TAG}, 1")
    p(f"s_lshl_b32 s63, s{S_CH}, 4")
    p(f"s_lshr_b32 s{S_LDT}, s{S_LDT}, s63")
    p(f"s_lshl_b32 s{S_LDT}, s{S_LDT}, 16")
    p(f"s_lshr_b32 s{S_DSK}, s{S_DSK}, s63")
    p(f"s_lshl_b32 s{S_DSK}, s{S_DSK}, 16")
    p(f"v_mov_b32 v36, s{S_LDT}")
    p(f"v_mov_b32 v37, {hx(f32(L2E_HI))}")
    p("v_mul_f32 v38, v36, v37")
    p("v_fma_f32 v39, v36, v37, -v38")
    p(f"v_fmac_f32 v39, {hx(f32(L2E_LO))}, v36")
    p("v_exp_f32 v38, v38")
    p(f"v_mul_f32 v39, {hx(f32(0.6931471805599453))}, v39")
    p("v_fma_f32 v38, v38, v39, v38")
    p("v_cvt_pk_bf16_f32 v38, v38, v38")
    p("v_lshlrev_b32 v36, 16, v38")
    for r in (41, 43, 45, 47): p(f"v_mov_b32 v{r}, s{S_TAG}")
    p("s_waitcnt vmcnt(9)")
    ts(p, 1, 0)
    p(f"ds_write_b128 v27, v[{VR}:{VR+3}]")
    for i in range(4): p(f"v_cndmask_b32 v{VR+i}, 0, v{VR+i}, vcc")
    p(f"v_dot2_f32_bf16 v48, v{VR}, v31, 0")
    p(f"v_dot2_f32_bf16 v49, v{VR}, v{VR}, 0")
    for i in range(1, 4):
        p(f"v_dot2_f32_bf16 v48, v{VR+i}, v31, v48")
        p(f"v_dot2_f32_bf16 v49, v{VR+i}, v{VR+i}, v49")
    p("s_nop 2")
    wave_red(p, (48, 49))
    ln_finish(p, 48, 49, 50)
    p("s_mov_b32 exec_lo, 0")
    p("s_mov_b32 exec_hi, 0x80000000")
    p("ds_write_b32 v27, v50 offset:16")
    p("s_mov_b64 exec, -1")
    p("s_waitcnt lgkmcnt(0)")
    p("s_barrier")
    p("ds_read_b32 v40, v28")
    p(f"ds_read_b32 v42, v28 offset:{XRP}")
    p("ds_read_b32 v44, v28 offset:512")
    p(f"ds_read_b32 v46, v28 offset:{XRP+512}")
    p("s_waitcnt lgkmcnt(2) vmcnt(0)")
    p(f"global_store_dwordx4 v29, v[40:43], {sp(P_WS)} sc1")
    p("v_add_u32 v29, 8192, v29")
    p("s_waitcnt lgkmcnt(0)")
    p("v_cmp_eq_u32 vcc, 96, v52")
    p("v_cndmask_b32 v29, v29, v30, vcc")
    p("v_cmp_gt_u32 vcc, 388, v0")
    p("s_and_saveexec_b64 s[64:65], vcc")
    p("s_cbranch_execz L_k1_nop2")
    p(f"global_store_dwordx4 v29, v[44:47], {sp(P_WS)} sc1")
    p.raw("L_k1_nop2:")
    p("s_mov_b64 exec, -1")
    p(f"s_cmp_ge_u32 s{S_T1}, 28")
    p("s_cbranch_scc1 L_k1_aux")
    ts(p, 8, 0)
    for i in range(6): p(f"v_lshlrev_b32 v{VP+i}, 16, v{VP+i}")
    p(f"v_mul_f32 v{VP}, v36, v{VP}")
    p(f"v_mul_f32 v{VP+1}, v36, v{VP+1}")
    p(f"v_mul_f32 v{VP+2}, v36, v{VP+2}")
    p(f"v_mul_f32 v{VP+3}, v36, v{VP+3}")
    p(f"v_mul_f32 v{VP}, v37, v{VP}")
    p(f"v_mul_f32 v{VP+1}, 0.15915494, v{VP+1}")
    Z1, Z8, Z256, Z2, Z4, Z512 = 40, 42, 44, 46, 48, 50
    p(f"v_mul_f32 v52, {hx(f32(8.0))}, v{VP}")
    p(f"v_mul_f32 v53, {hx(f32(8.0))}, v{VP+1}")
    p(f"v_mul_f32 v54, {hx(f32(256.0))}, v{VP}")
    p(f"v_mul_f32 v55, {hx(f32(256.0))}, v{VP+1}")
    p(f"v_fract_f32 v57, v{VP+1}")
    p("v_fract_f32 v53, v53")
    p("v_fract_f32 v55, v55")
    p("v_exp_f32 v52, v52")
    p(f"v_cos_f32 v{Z8}, v53")
    p(f"v_sin_f32 v{Z8+1}, v53")
    p(f"v_exp_f32 v56, v{VP}")
    p(f"v_cos_f32 v{Z1}, v57")
    p(f"v_sin_f32 v{Z1+1}, v57")
    p("v_exp_f32 v54, v54")
    p(f"v_cos_f32 v{Z256}, v55")
    p(f"v_sin_f32 v{Z256+1}, v55")
    H = 60
    L = [80 + 2 * i for i in range(8)]
    G = 96
    TMP = 124
    p(f"v_pk_mul_f32 v[{Z8}:{Z8+1}], v[{Z8}:{Z8+1}], v[52:53] op_sel:[0,0] op_sel_hi:[1,0]")
    p(f"v_pk_mul_f32 v[{Z1}:{Z1+1}], v[{Z1}:{Z1+1}], v[56:57] op_sel:[0,0] op_sel_hi:[1,0]")
    p(f"v_pk_mul_f32 v[{Z256}:{Z256+1}], v[{Z256}:{Z256+1}], v[54:55] op_sel:[0,0] op_sel_hi:[1,0]")
    tc = [0]
    def batch(ops):
        muls = [o for o in ops if len(o) == 5]
        for (_, d, a_, b_, cj) in muls:
            p(f"v_pk_mul_f32 {vr(d,2)}, {vr(a_,2)}, {vr(b_,2)} op_sel:[0,0] op_sel_hi:[1,0]")
        for (_, d, a_, b_, cj) in muls:
            neg = "neg_hi" if cj else "neg_lo"
            p(f"v_pk_fma_f32 {vr(d,2)}, {vr(a_,2)}, {vr(b_,2)}, {vr(d,2)} op_sel:[1,1,0] op_sel_hi:[0,1,1] {neg}:[1,0,0]")
        puts = [(o[0], o[1]) for o in ops if o[0] is not None]
        ts_ = []
        for (row, z) in puts:
            t = TMP + tc[0] % 8; tc[0] += 1
            p(f"v_cvt_pk_bf16_f32 v{t}, v{z}, v{z+1}"); ts_.append((row, t))
        for (row, t) in ts_:
            p(f"ds_write_addtid_b32 v{t} offset:{row*TPITCH}")
    L2_, L3_, L4_ = L[2], L[3], 120
    p("v_mov_b32 v122, 0x00003f80")
    p("ds_write_addtid_b32 v122 offset:0")
    batch([(None, H, VP + 4, VP + 2, False), (2, L2_, Z8, Z8, False), (None, Z2, Z1, Z1, False), (None, Z512, Z256, Z256, False), (1, Z8)])
    p(f"v_xor_b32 v{H+1}, 0x80000000, v{H+1}")
    batch([(3, L3_, L2_, Z8, False), (4, L4_, L2_, L2_, False), (None, Z4, Z2, Z2, False), (32, H + 2, H, Z1, True), (33, H + 4, H, Z2, True), (39, H + 16, H, Z8, True), (52, H)])
    batch([(5, L[5], Z8, L4_, False), (6, L[6], L2_, L4_, False), (7, L[7], L3_, L4_, False), (34, H + 6, H + 2, Z2, True), (35, H + 8, H, Z4, True), (36, H + 10, H + 2, Z4, True), (37, H + 12, H + 4, Z4, True)])
    src = [L4_, L[5], L[6], L[7]]
    hi_b = [[(38, H + 14, H + 6, Z4, True), (40, G, H + 4, Z256, True), (41, G + 2, H + 8, Z256, True), (43, G + 6, H + 16, Z256, True)],
            [(42, G + 4, H + 12, Z256, True), (44, G + 8, G + 2, Z256, True), (45, G + 10, G + 6, Z256, True)],
            [(46, G + 12, G + 2, Z512, True), (47, G + 14, G + 6, Z512, True)],
            [(48, G + 16, G + 10, Z512, True), (49, G + 18, G + 14, Z512, True)],
            [(50, G + 20, G + 16, Z512, True), (51, G + 22, G + 18, Z512, True)], []]
    for k in range(2, 8):
        dst = L[0:4] if k % 2 == 0 else L[4:8]
        batch([(4 * k + i, dst[i], src[i], L4_, False) for i in range(4)] + hi_b[k - 2])
        src = dst
    ts(p, 2, 0)
    VS = 104
    VXG = 112
    p("v_lshlrev_b32 v6, 5, v0")
    p(f"v_add_u32 v6, {WS_ST1}, v6")
    p("v_lshrrev_b32 v7, 1, v0")
    p("v_mul_u32_u24 v7, 14336, v7")
    p("v_and_b32 v14, 1, v0")
    p("v_lshl_add_u32 v7, v14, 5, v7")
    p(f"s_lshl_b32 s63, s{S_CP}, 6")
    p(f"s_add_u32 s63, s63, {WS_XT}")
    p("v_add_u32 v14, s63, v7")
    def handoff_loads():
        p(f"global_load_dwordx4 v[{VXG}:{VXG+3}], v14, {sp(P_WS)} sc1")
        p(f"global_load_dwordx4 v[{VXG+4}:{VXG+7}], v14, {sp(P_WS)} offset:16 sc1")
        p(f"global_load_dwordx4 v[{VS}:{VS+3}], v6, {sp(P_WS)} sc1")
        p(f"global_load_dwordx4 v[{VS+4}:{VS+7}], v6, {sp(P_WS)} offset:16 sc1")
    p("s_waitcnt lgkmcnt(0)")
    p("s_barrier")
    F = 128
    KA = 120
    for s_ in range(16):
        p(f"ds_read_b128 v[{F+8*s_}:{F+8*s_+3}], v{VT} offset:{16*s_}")
        p(f"ds_read_b128 v[{F+8*s_+4}:{F+8*s_+7}], v{VT+3} offset:{16*s_}")
    for s_ in range(16):
        p(f"s_waitcnt lgkmcnt({min(15, 2*(15-s_))})")
        c = "0" if s_ == 0 else vr(KA, 4)
        p(f"v_mfma_f32_16x16x32_bf16 {vr(KA,4)}, {vr(F+8*s_,4)}, {vr(F+8*s_+4,4)}, {c}")
    handoff_loads()
    assert all(((q * 4682) >> 16) == q // 14 for q in range(512))
    p(f"s_mov_b32 s72, s{P_WD}\ns_mov_b32 s73, s{P_WD+1}\ns_mov_b32 s74, {1792*896}\ns_mov_b32 s75, 0x00020000")
    p("v_min_u32 v15, 447, v0")
    p("v_mul_u32_u24 v26, 4682, v15")
    p("v_lshrrev_b32 v26, 16, v26")
    p("v_mul_u32_u24 v27, 14, v26")
    p("v_sub_u32 v27, v15, v27")
    p("v_mul_u32_u24 v26, 896, v26")
    p("v_lshl_add_u32 v26, v27, 4, v26")
    p(f"s_lshr_b32 s64, s{S_CP}, 2")
    p(f"s_mul_i32 s64, s64, {32*896}")
    p(f"s_and_b32 s65, s{S_CP}, 3")
    p("s_mul_i32 s65, s65, 224")
    p("s_add_u32 s64, s64, s65")
    p(f"s_min_u32 s65, s{S_W}, 6")
    p("s_lshl_b32 s65, s65, 10")
    p(f"s_add_u32 m0, s65, {L_XR}")
    p(f"s_cmp_eq_u32 s{S_W}, 7")
    p("s_cbranch_scc1 L_k1_nowd")
    p("buffer_load_dwordx4 v26, s[72:75], s64 offen lds")
    p.raw("L_k1_nowd:")
    p(f"s_mul_i32 s{S_T0}, s{S_CH}, {KACC_CH}")
    p(f"s_add_u32 s{S_T0}, s{S_T0}, {L_KACC}")
    GA = 60
    for i in range(4):
        p(f"v_and_b32 v{GA+2*i}, 0xffff, v{VG+i}")
        p(f"v_lshrrev_b32 v{GA+2*i+1}, 16, v{VG+i}")
    p(f"v_mov_b32 v{GA+8}, v{VG+4}")
    for i in range(9): p(f"v_add_u32 v{GA+i}, s{S_T0}, v{GA+i}")
    p(f"s_lshl_b32 s63, s{S_V}, 10")
    p(f"s_add_u32 s63, s63, s{S_T0}")
    p("v_lshl_add_u32 v7, v2, 2, s63")
    p(f"s_mul_i32 s{S_T0}, s{S_CH}, {KE_CH}")
    p(f"s_add_u32 s{S_T0}, s{S_T0}, {L_KE}")
    p(f"v_add_u32 v27, s{S_T0}, v5")
    VA = 36
    p("v_lshlrev_b32 v35, 3, v34")
    p("v_sub_u32 v35, v35, v33")
    p("v_add_u32 v35, 2031, v35")
    p("v_and_b32 v35, -2, v35")
    p("v_lshlrev_b32 v35, 1, v35")
    p("v_and_b32 v26, 1, v33")
    p("v_sub_u32 v26, 1, v26")
    p(f"v_mul_u32_u24 v26, {O_OFF}, v26")
    p(f"s_lshl_b32 s63, s{S_V}, 7")
    p(f"s_sub_u32 s{S_T0}, s{S_T0}, s63")
    p(f"s_sub_u32 s{S_T0}, s{S_T0}, {64 + 512}")
    p(f"v_add3_u32 v{VA}, v35, v26, s{S_T0}")
    p(f"ds_write2st64_b32 v7, v{KA}, v{KA+1} offset0:0 offset1:1")
    p(f"ds_write2st64_b32 v7, v{KA+2}, v{KA+3} offset0:2 offset1:3")
    for k in range(1, 4): p(f"v_subrev_u32 v{VA+k}, {1024*k}, v{VA}")
    VB = 40
    p(f"s_mul_i32 s{S_T0}, s{S_CH}, {U_CH}")
    p(f"s_add_u32 s{S_T0}, s{S_T0}, {L_U + 512 - 32 - 64}")
    p(f"s_sub_u32 s{S_T0}, s{S_T0}, s63")
    p("v_lshlrev_b32 v26, 5, v33")
    p("v_lshl_add_u32 v26, v34, 4, v26")
    p(f"v_add_u32 v{VB}, s{S_T0}, v26")
    p("s_waitcnt lgkmcnt(0)")
    p("s_barrier")
    ts(p, 3, 0)
    GV = 70
    for i in range(9): p(f"ds_read_b32 v{GV+i}, v{GA+i}")
    p("s_waitcnt lgkmcnt(0)")
    for i in range(4):
        p(f"v_cvt_pk_bf16_f32 v{80+i}, v{GV+2*i}, v{GV+2*i+1}")
        p(f"v_cvt_pk_bf16_f32 v{84+i}, v{GV+2*i+1}, v{GV+2*i+2}")
    p("ds_write_b128 v27, v[80:83]")
    p(f"ds_write_b128 v27, v[84:87] offset:{O_OFF}")
    ts(p, 9, 0)
    p.raw("L_k1_poll:")
    p("s_waitcnt vmcnt(0)")
    p(f"v_xor_b32 v88, s{S_TAG}, v{VS+1}")
    for r in (VS + 3, VS + 5, VS + 7, VXG + 1, VXG + 3, VXG + 5, VXG + 7):
        p(f"v_xor_b32 v89, s{S_TAG}, v{r}")
        p("v_or_b32 v88, v88, v89")
    p("v_cmp_ne_u32 vcc, 0, v88")
    p("s_cbranch_vccz L_k1_polldone")
    handoff_loads()
    p("s_branch L_k1_poll")
    p.raw("L_k1_polldone:")
    ts(p, 4, 0)
    U0, U1 = 88, 92
    for j in range(4):
        p(f"v_and_b32 v{128+j}, 0xffff0000, v{VS+2*j}")
        p(f"v_lshlrev_b32 v{132+j}, 16, v{VS+2*j}")
        p(f"v_lshlrev_b32 v{136+j}, 16, v{VXG+2*j}")
        p(f"v_and_b32 v{140+j}, 0xffff0000, v{VXG+2*j}")
    for j in range(4): p(f"v_rcp_f32 v{128+j}, v{128+j}")
    for j in range(4):
        p(f"v_sub_f32 v{136+j}, v{136+j}, v{132+j}")
        p(f"v_sub_f32 v{140+j}, v{140+j}, v{132+j}")
    for j in range(4): p(f"v_cvt_pk_bf16_f32 v{136+j}, v{136+j}, v{140+j}")
    for j in range(4):
        p(f"v_and_b32 v{140+j}, 0xffff0000, v{136+j}")
        p(f"v_lshlrev_b32 v{136+j}, 16, v{136+j}")
    for j in range(4):
        p(f"v_mul_f32 v{U0+j}, v{136+j}, v{128+j}")
        p(f"v_mul_f32 v{U1+j}, v{140+j}, v{128+j}")
    p(f"v_cvt_pk_bf16_f32 v{U0}, v{U0}, v{U0+1}")
    p(f"v_cvt_pk_bf16_f32 v{U0+1}, v{U0+2}, v{U0+3}")
    p(f"v_cvt_pk_bf16_f32 v{U1}, v{U1}, v{U1+1}")
    p(f"v_cvt_pk_bf16_f32 v{U1+1}, v{U1+2}, v{U1+3}")
    p("v_lshlrev_b32 v26, 3, v0")
    p(f"v_add_u32 v27, {L_U + 512}, v26")
    p(f"ds_write_b64 v27, v[{U0}:{U0+1}]")
    p(f"ds_write_b64 v27, v[{U1}:{U1+1}] offset:{U_CH}")
    p("s_mov_b32 s66, 0x05040100")
    p("s_mov_b32 s67, 0x07060302")
    p(f"v_perm_b32 v96, v{VXG+2}, v{VXG}, s66")
    p(f"v_perm_b32 v97, v{VXG+6}, v{VXG+4}, s66")
    p(f"v_perm_b32 v98, v{VXG+2}, v{VXG}, s67")
    p(f"v_perm_b32 v99, v{VXG+6}, v{VXG+4}, s67")
    p(f"ds_write_b64 v27, v[96:97] offset:{L_X - L_U - 512}")
    p(f"ds_write_b64 v27, v[98:99] offset:{L_X - L_U - 512 + 4096}")
    p("s_waitcnt lgkmcnt(0)")
    p("s_barrier")
    ts(p, 5, 0)
    p("v_lshrrev_b32 v26, 2, v2")
    p("v_mul_u32_u24 v26, 224, v26")
    p("v_and_b32 v27, 3, v2")
    p("v_lshl_add_u32 v26, v27, 3, v26")
    p(f"s_min_u32 s65, s{S_W}, 6")
    p("s_lshl_b32 s64, s65, 5")
    p(f"s_add_u32 s64, s64, {L_XR}")
    p("v_add_u32 v26, s64, v26")
    p("ds_read_b64_tr_b16 v[52:53], v26")
    p(f"ds_read_b64_tr_b16 v[54:55], v26 offset:{16*224}")
    p(f"s_and_b32 s64, s{S_CP}, 3")
    p("s_mul_i32 s64, s64, 7")
    p("s_add_u32 s64, s64, s65")
    p("s_mul_i32 s64, s64, 56")
    p(f"s_lshr_b32 s65, s{S_CP}, 2")
    p("s_add_u32 s64, s64, s65")
    p("s_lshl_b32 s64, s64, 10")
    p(f"s_add_u32 s64, s64, {WS_WDF}")
    p("v_lshl_add_u32 v56, v2, 4, s64")
    p(f"s_mul_i32 s64, s{S_T1}, {448*128}")
    p("v_lshl_add_u32 v57, v15, 7, s64")
    p(f"global_load_dword v58, v57, {sp(P_WG)}")
    p(f"global_load_dword v59, v57, {sp(P_WU)}")
    p("s_waitcnt lgkmcnt(0)")
    p(f"global_store_dwordx4 v56, v[52:55], {sp(P_WS)} sc1")
    FA = [64, 128]; FB = [96, 160]
    ACC = 192
    def ld(rr, k):
        a = FA[rr] + 4 * k
        o = (1 - (k & 1)) * 128 + (1 - rr) * 16
        b = FB[rr] + 4 * k
        return [f"ds_read2_b32 v[{a}:{a+1}], v{VA + (k >> 1)} offset0:{o} offset1:{o+1}",
                f"ds_read2_b32 v[{a+2}:{a+3}], v{VA + (k >> 1)} offset0:{o+2} offset1:{o+3}",
                f"ds_read_b128 v[{b}:{b+3}], v{VB} offset:{512*k + (1-rr)*64}"]
    seq = [(rr, k) for rr in range(2) for k in range(8)]
    AHEAD = 5
    for i in range(AHEAD):
        for x in ld(*seq[i]): p(x)
    pend = []
    for j in range(AHEAD, len(seq)): pend += ld(*seq[j])
    issued = 3 * AHEAD
    first = set()
    for i, (rr, k) in enumerate(seq):
        needn = 3 * (i + 1)
        while issued < needn + 3 and pend:
            p(pend.pop(0)); issued += 1
        p(f"s_waitcnt lgkmcnt({min(15, issued - needn)})")
        pairs = [(k, q) for q in range(k + 1) if k + q <= 7] + [(m, k) for m in range(k) if m + k <= 7]
        for (m, q) in pairs:
            n = m + q
            d = ACC + 4 * n
            c = vr(d, 4) if n in first else "0"
            first.add(n)
            p(f"v_mfma_f32_16x16x32_bf16 {vr(d,4)}, {vr(FA[rr]+4*m,4)}, {vr(FB[rr]+4*q,4)}, {c}")
            if pend and issued - needn < 14:
                p(pend.pop(0)); issued += 1
    ts(p, 6, 0)
    p(f"s_lshl_b32 s{S_T0}, s{S_W}, 13")
    p(f"v_lshl_add_u32 v26, v2, 4, s{S_T0}")
    for n in range(8):
        p(f"ds_write_b128 v26, v[{ACC+4*n}:{ACC+4*n+3}] offset:{L_PX + n*1024}")
    p(f"s_lshl_b32 s{S_T0}, s{S_CH}, 15")
    p(f"s_lshl_b32 s63, s{S_V}, 11")
    p(f"s_add_u32 s{S_T0}, s{S_T0}, s63")
    p(f"v_lshl_add_u32 v27, v2, 4, s{S_T0}")
    p("v_lshlrev_b32 v28, 5, v33")
    p("v_lshl_add_u32 v28, v34, 3, v28")
    p(f"s_lshl_b32 s63, s{S_V}, 10")
    p("v_add_u32 v28, s63, v28")
    p(f"s_mul_i32 s{S_T0}, s{S_CH}, {U_CH}")
    p(f"s_add_u32 s{S_T0}, s{S_T0}, {L_U + 512}")
    p(f"v_add_u32 v29, s{S_T0}, v28")
    p(f"s_lshl_b32 s{S_T0}, s{S_CH}, 12")
    p(f"s_add_u32 s{S_T0}, s{S_T0}, {L_X}")
    p(f"v_add_u32 v30, s{S_T0}, v28")
    p("ds_read_b64 v[44:45], v29")
    p("ds_read_b64 v[46:47], v29 offset:512")
    p("ds_read_b64 v[48:49], v30")
    p("ds_read_b64 v[50:51], v30 offset:512")
    p(f"s_lshl_b32 s{S_T0}, s{S_D}, 12")
    p(f"s_add_u32 s{S_T0}, s{S_T0}, {WS_HT}")
    p(f"v_add_u32 v28, s{S_T0}, v28")
    p("s_waitcnt lgkmcnt(0)")
    for q in range(4):
        p(f"v_lshlrev_b32 v{112+2*q}, 16, v{44+q}")
        p(f"v_and_b32 v{113+2*q}, 0xffff0000, v{44+q}")
        p(f"v_lshlrev_b32 v{120+2*q}, 16, v{48+q}")
        p(f"v_and_b32 v{121+2*q}, 0xffff0000, v{48+q}")
    for q in range(8): p(f"v_mul_f32 v{112+q}, s{S_DSK}, v{112+q}")
    for q in range(4): p(f"v_cvt_pk_bf16_f32 v{44+q}, v{112+2*q}, v{113+2*q}")
    for q in range(4):
        p(f"v_lshlrev_b32 v{112+2*q}, 16, v{44+q}")
        p(f"v_and_b32 v{113+2*q}, 0xffff0000, v{44+q}")
    p("s_barrier")
    for t in range(2):
        for src_ in range(4):
            r = 64 + (t * 4 + src_) * 4
            p(f"ds_read_b128 v[{r}:{r+3}], v27 offset:{L_PX + src_*8192 + t*1024}")
    p(f"s_or_b32 s63, s2, s{S_W}")
    p("s_cmp_lg_u32 s63, 0")
    p("s_cbranch_scc1 L_k1_nobump")
    p("v_mov_b32 v100, 0")
    p(f"v_mov_b32 v101, s{S_TAG}")
    p(f"global_store_dword v100, v101, {sp(P_WS)} offset:{WS_EPOCH} sc1")
    p.raw("L_k1_nobump:")
    p("s_waitcnt lgkmcnt(0)")
    for st in ((0, 4), (8, 12), (0, 8)):
        for t in range(2):
            for q in range(2):
                x = 64 + 16 * t + st[0] + 2 * q; y = 64 + 16 * t + st[1] + 2 * q
                p(f"v_pk_add_f32 v[{x}:{x+1}], v[{x}:{x+1}], v[{y}:{y+1}]")
    ys = [64, 66, 80, 82]
    for q in range(4): p(f"v_cvt_pk_bf16_f32 v{100+q}, v{ys[q]}, v{ys[q]+1}")
    for q in range(4):
        p(f"v_lshlrev_b32 v{104+2*q}, 16, v{100+q}")
        p(f"v_and_b32 v{105+2*q}, 0xffff0000, v{100+q}")
    for q in range(4): p(f"v_pk_add_f32 v[{104+2*q}:{105+2*q}], v[{104+2*q}:{105+2*q}], v[{112+2*q}:{113+2*q}]")
    for q in range(4): p(f"v_cvt_pk_bf16_f32 v{100+q}, v{104+2*q}, v{105+2*q}")
    for q in range(4):
        p(f"v_lshlrev_b32 v{104+2*q}, 16, v{100+q}")
        p(f"v_and_b32 v{105+2*q}, 0xffff0000, v{100+q}")
    for q in range(4): p(f"v_pk_add_f32 v[{104+2*q}:{105+2*q}], v[{104+2*q}:{105+2*q}], v[{120+2*q}:{121+2*q}]")
    for q in range(4): p(f"v_cvt_pk_bf16_f32 v{100+q}, v{104+2*q}, v{105+2*q}")
    p(f"global_store_dwordx2 v28, v[100:101], {sp(P_WS)} sc1")
    p(f"global_store_dwordx2 v28, v[102:103], {sp(P_WS)} offset:512 sc1")
    ts(p, 7, 0)
    ts_flush(p, 0, P_WS, S_W)
    p("s_endpgm")

    p.raw("L_k1_aux:")
    S_A = 51
    p(f"s_and_b32 s{S_T0}, s2, 7")
    p(f"s_lshl_b32 s{S_A}, s{S_T0}, 2")
    p(f"s_add_u32 s{S_A}, s{S_A}, s{S_T1}")
    p(f"s_sub_u32 s{S_A}, s{S_A}, 28")
    assert all(((t * 1171) >> 16) == t // 56 for t in range(512))
    p("v_mul_u32_u24 v6, 1171, v0")
    p("v_lshrrev_b32 v6, 16, v6")
    p("v_mul_u32_u24 v7, 56, v6")
    p("v_sub_u32 v7, v0, v7")
    p("v_min_u32 v6, 7, v6")
    p("v_cmp_lt_u32 vcc, 27, v7")
    p("v_subrev_u32 v8, 28, v7")
    p("v_cndmask_b32 v8, v7, v8, vcc")
    p(f"v_mov_b32 v10, s{P_WG}")
    p(f"v_mov_b32 v11, s{P_WG+1}")
    p(f"v_mov_b32 v12, s{P_WU}")
    p(f"v_mov_b32 v13, s{P_WU+1}")
    p("v_cndmask_b32 v10, v10, v12, vcc")
    p("v_cndmask_b32 v11, v11, v13, vcc")
    p(f"s_and_b32 s{S_T0}, s{S_A}, 3")
    p(f"s_mul_i32 s{S_T1}, s{S_T0}, {112*3584}")
    p(f"s_lshr_b32 s{S_T2}, s{S_A}, 2")
    p(f"s_mul_i32 s66, s{S_T2}, 448")
    p(f"s_add_u32 s{S_T1}, s{S_T1}, s66")
    p(f"v_mul_u32_u24 v9, {14*3584}, v6")
    p("v_lshl_add_u32 v9, v8, 4, v9")
    p(f"v_add_u32 v9, s{S_T1}, v9")
    p("v_add_co_u32 v10, vcc, v10, v9")
    p("v_addc_co_u32 v11, vcc, 0, v11, vcc")
    for i in range(14):
        p(f"global_load_dwordx4 v[{104+4*i}:{107+4*i}], v[10:11], off")
        if i < 13:
            p("v_add_co_u32 v10, vcc, 3584, v10")
            p("v_addc_co_u32 v11, vcc, 0, v11, vcc")
    p("s_getpc_b64 s[60:61]")
    p.raw("L_k1_pc1:")
    p("s_add_u32 s60, s60, k1_code_end-L_k1_pc1")
    p("s_addc_u32 s61, s61, 0")
    p("v_lshlrev_b32 v1, 7, v0")
    p("v_min_u32 v1, all_code_end-k1_code_end-4, v1")
    p("global_load_dword v100, v1, s[60:61]")
    for i in range(14):
        p(f"s_waitcnt vmcnt({13-i+1})")
        for k in range(4):
            d = 16 if i == 0 else 24
            p(f"v_lshlrev_b32 v{d+2*k}, 16, v{104+4*i+k}")
            p(f"v_and_b32 v{d+1+2*k}, 0xffff0000, v{104+4*i+k}")
            if i: p(f"v_pk_add_f32 v[{16+2*k}:{17+2*k}], v[{16+2*k}:{17+2*k}], v[{24+2*k}:{25+2*k}]")
    L_CS = 57344
    p("v_lshlrev_b32 v7, 5, v0")
    p(f"v_add_u32 v7, {L_CS}, v7")
    p("ds_write_b128 v7, v[16:19]")
    p("ds_write_b128 v7, v[20:23] offset:16")
    p("s_waitcnt vmcnt(0) lgkmcnt(0)")
    p("s_barrier")
    p("v_lshlrev_b32 v103, 2, v0")
    p(f"v_add_u32 v7, {L_CS}, v103")
    for i in range(8): p(f"ds_read_b32 v{48+i}, v7 offset:{1792*i}")
    p("v_cmp_lt_u32 vcc, 223, v0")
    p(f"v_mov_b32 v14, {7168 - 896}")
    p("v_cndmask_b32 v14, 0, v14, vcc")
    p(f"s_mul_i32 s68, s{S_T0}, 14336")
    p(f"s_mul_i32 s69, s{S_T2}, 896")
    p("s_add_u32 s68, s68, s69")
    p(f"s_add_u32 s68, s68, {WS_PCS}")
    p("v_add3_u32 v103, v103, v14, s68")
    p("s_waitcnt lgkmcnt(0)")
    for i in range(1, 4): p(f"v_pk_add_f32 v[48:49], v[48:49], v[{48+2*i}:{49+2*i}]")
    p("v_add_f32 v8, v48, v49")
    p(f"s_cmp_ge_u32 s{S_W}, 7")
    p("s_cbranch_scc1 L_k1_nocs")
    p(f"global_store_dword v103, v8, {sp(P_WS)}")
    p.raw("L_k1_nocs:")
    p.raw("L_k1_auxdone:")
    ts(p, 7, 0)
    ts_flush(p, 0, P_WS, S_W)
    p.raw(f"L_{name}_exit:")
    p("s_endpgm")
    tab = gather_table()
    p.raw(".p2align 4\n.type k1_gtab,@object\nk1_gtab:")
    for i in range(0, len(tab), 8):
        p.raw(".short " + ", ".join(str(v) for v in tab[i:i+8]))
    p.raw(f".size k1_gtab, {2*len(tab)}")
    p.raw("k1_code_end:")

def main():
    hdr = open(f"cdna_kernels/{NAME}.s.ref").read().split("; Override launch")[0]
    launches = [("k1_kernel", 256, 512, L_K1_END)]
    try:
        import gen23
        launches += gen23.launches()
    except ImportError:
        gen23 = None
    extra = int(sys.argv[sys.argv.index("--extra") + 1]) if "--extra" in sys.argv else 0
    launches += [("e_kernel", 256, 64, 0)] * extra
    out = hdr
    for k, g, b, l in launches:
        out += f"; @launch kernel={k} grid=({g},1,1) block=({b},1,1) lds={l}\n"
    out += '.amdgcn_target "amdgcn-amd-amdhsa--gfx950"\n.text\n'
    p = Prog(); gen_k1(p); out += p.render()
    kds = kd("k1_kernel", 256, 102)
    if gen23:
        t, k = gen23.gen(); out += t; kds += k
    out += "all_code_end:\n"
    if extra:
        out += ".globl e_kernel\n.p2align 8\n.type e_kernel,@function\ne_kernel:\n    s_endpgm\n"
        kds += kd("e_kernel", 8, 8)
    out += '.section .rodata,"a"\n' + kds
    dst = sys.argv[1] if len(sys.argv) > 1 and not sys.argv[1].startswith("--") else f"cdna_kernels/{NAME}.s"
    open(dst, "w").write(out)
    print("wrote", dst, len(out), "bytes; K1 LDS", L_K1_END)

if __name__ == "__main__":
    main()
```

```python
import re

TRANS = ("v_exp_f32", "v_log_f32", "v_rcp_f32", "v_rsq_f32", "v_sqrt_f32", "v_sin_f32", "v_cos_f32", "v_rcp_iflag_f32")
_REG = re.compile(r"^(-|abs\()?([vas])(\d+|\[(\d+):(\d+)\])\)?$")

def regs_of(tok):
    tok = tok.strip()
    if tok in ("vcc", "exec", "m0", "scc"): return {tok}
    if tok in ("vcc_lo", "vcc_hi"): return {"vcc"}
    if tok in ("exec_lo", "exec_hi"): return {"exec"}
    t = tok.lstrip("-")
    if t.startswith("abs(") and t.endswith(")"): t = t[4:-1]
    if t.startswith("|") and t.endswith("|"): t = t[1:-1]
    m = re.match(r"^([vas])(\d+)$", t)
    if m: return {m.group(1) + m.group(2)}
    m = re.match(r"^([vas])\[(\d+):(\d+)\]$", t)
    if m: return {m.group(1) + str(i) for i in range(int(m.group(2)), int(m.group(3)) + 1)}
    return set()

class Ins:
    __slots__ = ("text", "op", "ops", "mods", "cls", "w", "r", "passes", "srcC", "srcAB", "states", "dpp", "data")
    def __init__(self, text):
        self.text = text
        body = text.split(";")[0].strip()
        parts = body.split(None, 1)
        self.op = parts[0]
        rest = parts[1] if len(parts) > 1 else ""
        ops, depth, cur = [], 0, ""
        for ch in rest:
            if ch in "[(": depth += 1
            if ch in "])": depth -= 1
            if ch == "," and depth == 0: ops.append(cur.strip()); cur = ""
            else: cur += ch
        if cur.strip(): ops.append(cur.strip())
        mods = ""
        if ops:
            last = ops[-1].split(None, 1)
            if len(last) > 1: ops[-1] = last[0]; mods = last[1]
        self.ops, self.mods = ops, mods
        self.w, self.r = set(), set()
        self.passes = 0; self.srcC = set(); self.srcAB = set(); self.states = 1; self.data = set()
        op = self.op
        self.dpp = "_dpp" in op or "quad_perm" in mods or "row_" in mods
        R = [regs_of(o) for o in ops]
        if op.startswith("v_mfma"):
            self.cls = "mfma"
            self.passes = 8 if "32x32" in op else 4
            self.w = R[0]; self.srcAB = R[1] | R[2]; self.srcC = R[3]; self.r = self.srcAB | self.srcC
        elif op.startswith("v_"):
            self.cls = "valu"
            if op.startswith("v_cmp"):
                self.w = R[0]; self.r = set().union(*R[1:])
            elif op.startswith("v_permlane") and "swap" in op:
                self.w = R[0] | R[1]; self.r = R[0] | R[1]
            elif "_co_" in op or op.startswith("v_mad_u64") or op.startswith("v_div_scale"):
                self.w = R[0] | R[1]; self.r = set().union(*R[2:])
            elif op == "v_nop":
                pass
            else:
                self.w = R[0]; self.r = set().union(*R[1:]) if len(R) > 1 else set()
                if op.startswith(("v_fmac", "v_dot2c", "v_pk_fmac", "v_writelane")) or self.dpp: self.r |= R[0]
                if op.startswith("v_cndmask") and len(R) == 3: self.r |= {"vcc"}
        elif op.startswith("ds_"):
            self.cls = "ds"
            if op.startswith(("ds_read", "ds_bpermute", "ds_permute", "ds_swizzle")) or "_rtn" in op:
                self.w = R[0]; self.r = set().union(*R[1:]) if len(R) > 1 else set()
            else:
                self.r = set().union(*R)
            if "addtid" in op: self.r |= {"m0"}
        elif op.startswith(("buffer_", "global_", "flat_")):
            self.cls = "vmem"
            lds = " lds" in (" " + mods) or "_lds_" in op
            if op in ("buffer_wbl2", "buffer_inv"): pass
            elif lds:
                self.r = set().union(*R) | {"m0"}
            elif "_load" in op:
                self.w = R[0]; self.r = set().union(*R[1:])
                if "d16" in op: self.r |= R[0]
            elif "atomic" in op:
                self.r = set().union(*R)
                if "sc0" in mods: self.w = R[0]
            else:
                self.r = set().union(*R)
                if "x3" in op or "x4" in op:
                    self.data = R[0] if op.startswith("buffer_") else R[1]
        elif op.startswith("s_"):
            self.cls = "salu"
            if op == "s_nop": self.states = int(ops[0], 0) + 1
            if op.startswith(("s_cmp", "s_cbranch", "s_branch", "s_waitcnt", "s_barrier", "s_nop", "s_endpgm", "s_sleep", "s_setprio", "s_bitcmp")):
                self.r = set().union(*R) if R else set()
            else:
                self.w = R[0] if R else set(); self.r = set().union(*R[1:]) if len(R) > 1 else set()
                if "saveexec" in op: self.w |= {"exec"}
        else:
            raise ValueError("unknown instruction: " + text)

def need(p, c):
    n = 0
    pv = {x for x in p.w if x[0] in "va" and x not in ("vcc",)}
    ps = p.w - pv
    if p.cls == "valu":
        if c.cls == "mfma" and pv & c.r: n = max(n, 2)
        if p.op.replace("_e32", "").replace("_e64", "") in TRANS and pv & (c.r | c.w) and not (c.cls == "valu" and c.op in TRANS and False): n = max(n, 1)
        if c.cls == "valu" and c.dpp and pv & c.r: n = max(n, 2)
        if c.op.startswith(("v_readlane", "v_readfirstlane")) and pv & c.r: n = max(n, 1)
        if c.op.startswith("v_permlane") and pv & c.r: n = max(n, 2)
        if ps:
            if c.cls in ("valu", "mfma") and ps & c.r: n = max(n, 4 if c.op.startswith(("v_readlane", "v_writelane")) else 2)
            if c.cls == "vmem" and ps & c.r: n = max(n, 5)
            if c.cls == "salu" and ps & c.r and c.op.startswith("s_load"): n = max(n, 5)
    if p.cls == "mfma":
        P = p.passes
        if c.cls == "mfma":
            if p.w & c.srcAB: n = max(n, P + 4)
            if p.w & c.srcC:
                if not (p.w == c.srcC and p.passes == c.passes): n = max(n, P + 2)
            elif p.w & c.w: n = max(n, P + 2)
        elif c.cls in ("valu", "ds", "vmem"):
            if p.w & (c.r | c.w): n = max(n, P + 4)
        if c.cls == "valu" and p.srcC & c.w: n = max(n, P - 1)
    if p.cls == "salu" and "m0" in p.w and "m0" in c.r and c.cls in ("ds", "vmem"): n = max(n, 1)
    if p.cls == "vmem" and p.data and (p.data & c.w): n = max(n, 2 if c.cls in ("valu", "mfma") else 1)
    return n

E32 = ("v_mov_b32", "v_add_u32", "v_sub_u32", "v_subrev_u32", "v_and_b32", "v_or_b32", "v_xor_b32", "v_lshlrev_b32", "v_lshrrev_b32",
       "v_ashrrev_i32", "v_mul_f32", "v_add_f32", "v_sub_f32", "v_subrev_f32", "v_max_f32", "v_min_f32", "v_min_u32", "v_max_u32", "v_mul_u32_u24",
       "v_exp_f32", "v_sin_f32", "v_cos_f32", "v_rcp_f32", "v_sqrt_f32", "v_rsq_f32", "v_fract_f32", "v_fmac_f32", "v_cndmask_b32",
       "v_cvt_f32_u32", "v_cvt_u32_f32", "v_not_b32", "v_log_f32")
VOP1 = ("v_mov_b32", "v_exp_f32", "v_sin_f32", "v_cos_f32", "v_rcp_f32", "v_sqrt_f32", "v_rsq_f32", "v_fract_f32", "v_cvt_f32_u32", "v_cvt_u32_f32", "v_not_b32", "v_log_f32")
def is_lit(tok):
    tok = tok.strip()
    if regs_of(tok) or tok in ("off",): return False
    try:
        v = int(tok, 0)
        return not (-16 <= v <= 64)
    except ValueError:
        pass
    try:
        f = float(tok)
        return f not in (0.5, -0.5, 1.0, -1.0, 2.0, -2.0, 4.0, -4.0, 0.0) and abs(f - 0.15915494) > 1e-6
    except ValueError:
        return True
def size_of(i):
    op = i.op
    if i.cls in ("mfma", "ds", "vmem"): return 8, False
    if i.cls == "salu":
        if op.startswith(("s_load", "s_memtime", "s_memrealtime", "s_buffer_load", "s_atomic", "s_dcache")): return 8, False
        if op.startswith(("s_cbranch", "s_branch", "s_waitcnt", "s_barrier", "s_nop", "s_endpgm", "s_sleep", "s_setprio", "s_movk", "s_addk", "s_mulk", "s_getreg", "s_getpc")): return 4, False
        return (8 if any(is_lit(o) for o in i.ops[1:] if True) or (op.startswith("s_cmp") and is_lit(i.ops[0])) else 4), False
    if i.dpp or op.endswith("_e64"): return 8, False
    if op.startswith(("v_readfirstlane", "v_permlane")) or op == "v_nop": return 4, False
    mod = bool(i.mods) or any(o.startswith(("-v", "-s", "abs", "|")) for o in i.ops)
    if op.startswith("v_cmp"):
        e32 = i.ops[0] == "vcc" and i.ops[2].startswith("v") and not mod
    elif op in E32:
        if op in VOP1: e32 = not mod
        elif op == "v_cndmask_b32": e32 = i.ops[2].startswith("v") and (len(i.ops) == 3 or i.ops[3] == "vcc") and not mod
        else: e32 = i.ops[2].startswith("v") and i.ops[2] != "vcc" and not mod
    else:
        return 8, False
    if not e32: return 8, False
    if any(is_lit(o) for o in i.ops[1:]): return 8, False
    return 4, True

class Prog:
    def __init__(self):
        self.items = []
    def __call__(self, text):
        for line in text.strip("\n").split("\n"):
            l = line.strip()
            if not l or l.startswith(";"):
                if l: self.items.append("    " + l)
                continue
            if l.endswith(":") or l.startswith("."):
                self.items.append(l); continue
            self.items.append(Ins(l))
    def raw(self, text): self.items.append(text)
    def render(self, align=True):
        check_waits(self.items)
        seq = []; hist = []
        for it in self.items:
            if isinstance(it, str):
                seq.append(it); continue
            pad = 0; dist = 0
            for p in reversed(hist):
                n = need(p, it)
                if n > dist: pad = max(pad, n - dist)
                dist += p.states
                if dist > 24: break
            while pad > 0:
                k = min(pad, 16)
                nop = Ins(f"s_nop {k-1} ; auto")
                seq.append(nop); hist.append(nop); pad -= k
            seq.append(it); hist.append(it)
            if len(hist) > 40: hist = hist[-40:]
        out = []; off = 0; lastp = None
        ins_idx = [k for k, x in enumerate(seq) if not isinstance(x, str)]
        sizes = {k: size_of(seq[k]) for k in ins_idx}
        for k, it in enumerate(seq):
            if isinstance(it, str):
                if ".p2align" in it: off = 0; lastp = None
                out.append(it); continue
            sz, prom = sizes[k]
            if align and sz == 8 and off % 8 == 4:
                if lastp is not None:
                    t = out[lastp].strip().split(None, 1)
                    out[lastp] = "    " + t[0] + "_e64 " + t[1]
                    off += 4
                else:
                    run = 0; j = k
                    while j < len(seq) and (isinstance(seq[j], str) or sizes[j][0] == 8):
                        if not isinstance(seq[j], str): run += 1
                        j += 1
                    if run >= 6:
                        out.append("    s_nop 0 ; align"); off += 4
            out.append("    " + it.text)
            if sz == 8: lastp = None
            elif prom: lastp = len(out) - 1
            off += sz
        return "\n".join(out) + "\n"

def check_waits(items, verbose=True):
    states = {((), ())}
    pending = {}
    errs = []
    for it in items:
        if isinstance(it, str):
            l = it.strip().split("\n")[-1]
            if l.endswith(":"):
                lab = l[:-1]
                if lab.endswith("_kernel"): states = {((), ())}
                states = states | pending.pop(lab, set())
            continue
        if not states: continue
        op = it.op
        touched = it.r | it.w
        new = set()
        for (vm, lg) in states:
            if op == "s_waitcnt":
                txt = it.text.split(";")[0]
                m = re.search(r"vmcnt\((\d+)\)", txt)
                if m: vm = vm[len(vm) - int(m.group(1)):] if int(m.group(1)) < len(vm) else vm
                if m and int(m.group(1)) == 0: vm = ()
                m = re.search(r"lgkmcnt\((\d+)\)", txt)
                if m:
                    n = int(m.group(1))
                    if n == 0: lg = ()
                    elif not any("S" in e for e in lg): lg = lg[len(lg) - n:] if n < len(lg) else lg
                new.add((vm, lg)); continue
            for q, nm in ((vm, "vm"), (lg, "lgkm")):
                for e in q:
                    bad = e & touched
                    if bad and not (it.cls == "vmem" and nm == "vm" and not (e & it.r)) and not (it.cls == "ds" and nm == "lgkm" and not (e & it.r)):
                        errs.append(f"{nm} pending {sorted(bad)} touched by: {it.text}")
            if it.cls == "vmem" and op not in ("buffer_wbl2", "buffer_inv"): vm = vm + (frozenset(it.w),)
            elif it.cls == "ds": lg = lg + (frozenset(it.w),)
            elif op.startswith(("s_load", "s_memtime", "s_memrealtime")): lg = lg + (frozenset(set(it.w) | {"S"}),)
            new.add((vm, lg))
        states = new
        if op.startswith("s_cbranch"):
            pending.setdefault(it.ops[0], set()).update(states)
        elif op == "s_branch":
            pending.setdefault(it.ops[0], set()).update(states); states = set()
        elif op == "s_endpgm": states = set()
    seen = []
    for e in errs:
        if e not in seen: seen.append(e)
    if verbose:
        for e in seen[:40]: print("WAITCHECK:", e)
    return seen

def kd(name, vgpr, sgpr, accum=None):
    accum = accum if accum is not None else (vgpr + 3) // 4 * 4
    return f""".p2align 6
.amdhsa_kernel {name}
  .amdhsa_next_free_vgpr {vgpr}
  .amdhsa_next_free_sgpr {sgpr}
  .amdhsa_accum_offset {accum}
  .amdhsa_group_segment_fixed_size 0
  .amdhsa_kernarg_size 128
  .amdhsa_user_sgpr_count 2
  .amdhsa_user_sgpr_kernarg_segment_ptr 1
  .amdhsa_system_sgpr_workgroup_id_x 1
.end_amdhsa_kernel
"""
def vr(b, n=1): return f"v{b}" if n == 1 else f"v[{b}:{b+n-1}]"
def sr(b, n=1): return f"s{b}" if n == 1 else f"s[{b}:{b+n-1}]"
```

```python
import sys
from asmgen import *
import gen as G
from gen import *

NST = 4
STAGES = "--stages" in sys.argv
if STAGES:
    def ts(p, slot, kern, sreg=96): pass
STG = 16384 + 8192
WPOS = [4 * STG + 4096 * i for i in range(12)] + [2 * STG + 4096 * i for i in range(6)] + [3 * STG + 4096 * i for i in range(6)] + [4096 * i for i in range(4)]
L2_CS = 6 * STG
L2_ST = L2_CS + 512
L2_END = L2_ST + 2048
assert L2_END <= 163840

def gen_k2(p):
    name = "k2_kernel"
    prologue(p, name, 256)
    S_W, S_FS, S_RB, S_T0, S_T1, S_T2, S_LV, S_TAG, S_A, S_B = 48, 49, 50, 51, 52, 53, 54, 55, 72, 73
    p("v_lshrrev_b32 v1, 6, v0")
    p("v_and_b32 v2, 63, v0")
    p(f"v_readfirstlane_b32 s{S_W}, v1")
    S_X, S_J = 77, 78
    p(f"s_and_b32 s{S_X}, s2, 7")
    p(f"s_lshr_b32 s{S_J}, s2, 3")
    assert all(((j * 37) >> 8) == j // 7 for j in range(32))
    p(f"s_mul_i32 s{S_T0}, s{S_J}, 37")
    p(f"s_lshr_b32 s{S_T0}, s{S_T0}, 8")
    p(f"s_and_b32 s{S_RB}, s{S_X}, 4")
    p(f"s_add_u32 s{S_RB}, s{S_RB}, s{S_T0}")
    p(f"s_and_b32 s{S_T1}, s{S_X}, 3")
    p(f"s_sub_u32 s{S_T1}, s{S_T1}, s{S_T0}")
    p(f"s_mul_i32 s{S_T1}, s{S_T1}, 7")
    p(f"s_add_u32 s{S_FS}, s{S_T1}, s{S_J}")
    p("s_waitcnt lgkmcnt(0)")
    p(f"s_load_dword s{S_TAG}, {sp(P_WS)}, {WS_EPOCH}")
    for base, ptr, n in ((56, P_WS, WS_SIZE), (60, P_WG, 448 * 3584), (64, P_WU, 448 * 3584)):
        p(f"s_mov_b32 s{base}, s{ptr}\ns_mov_b32 s{base+1}, s{ptr+1}\ns_mov_b32 s{base+2}, {n}\ns_mov_b32 s{base+3}, 0x00020000")
    ts(p, 0, 1)
    p(f"s_cmp_ge_u32 s{S_J}, 28")
    p("s_cbranch_scc1 L_k2_aux")
    p(f"s_lshr_b32 s{S_T0}, s{S_J}, 2")
    p(f"s_mul_i32 s{S_A}, s{S_T0}, {4*57344}")
    p(f"s_add_u32 s{S_A}, s{S_A}, {WS_WDF}")
    p(f"s_and_b32 s{S_T0}, s{S_J}, 3")
    p(f"s_lshl_b32 s{S_T1}, s{S_X}, 2")
    p(f"s_add_u32 s{S_T0}, s{S_T0}, s{S_T1}")
    p(f"s_mul_i32 s{S_B}, s{S_T0}, {4*57344}")
    p(f"s_add_u32 s{S_B}, s{S_B}, {WS_HMF}")
    p(f"s_mul_i32 s{S_T0}, s{S_W}, 7168")
    p(f"v_lshl_add_u32 v3, v2, 4, s{S_T0}")
    WD = 8
    def wd_loads(lo=0, hi=28):
        for ks in range(7):
            for j in range(4):
                if not lo <= ks * 4 + j < hi: continue
                r = WD + (ks * 4 + j) * 4
                p(f"s_add_u32 s{S_T0}, s{S_A}, {j*57344 + ks*1024}")
                p(f"buffer_load_dwordx4 v[{r}:{r+3}], v3, s[56:59], s{S_T0} offen")
    p(f"s_cmp_ge_u32 s{S_W}, 4")
    p("s_cbranch_scc1 L_k2_load")
    FR = [8, 56]
    AH = 104
    AW = 116
    ACC = 128
    p("v_lshrrev_b32 v6, 2, v2")
    p("v_and_b32 v5, 3, v2")
    p("v_and_b32 v7, 7, v6")
    for t in range(4):
        p(f"s_lshl_b32 s{S_T0}, s{S_W}, 2")
        p(f"s_add_u32 s{S_T0}, s{S_T0}, {t}")
        p(f"v_xor_b32 v4, s{S_T0}, v7")
        p("v_lshlrev_b32 v4, 5, v4")
        p("v_lshl_add_u32 v4, v6, 9, v4")
        p(f"v_lshl_add_u32 v{AH+t}, v5, 3, v4")
        for b in (1,): p(f"v_add_u32 v{AH+4*b+t}, {2*STG*b}, v{AH+t}")
    p("v_bfe_u32 v7, v6, 1, 2")
    for j in range(4):
        p(f"v_xor_b32 v4, {j}, v7")
        p("v_lshlrev_b32 v4, 5, v4")
        p("v_lshl_add_u32 v4, v6, 7, v4")
        p("v_lshl_add_u32 v4, v5, 3, v4")
        p(f"v_add_u32 v{AW+j}, 16384, v4")
        for b in (1,): p(f"v_add_u32 v{AW+4*b+j}, {2*STG*b}, v{AW+j}")
    def reads(s):
        st = s % NST; b = st // 2; o = (st % 2) * STG
        fr = FR[s & 1]
        out = []
        for t in range(4):
            r = fr + 32 + 4 * t
            out.append(f"ds_read_b64_tr_b16 v[{r}:{r+1}], v{AH+4*b+t} offset:{o}")
            out.append(f"ds_read_b64_tr_b16 v[{r+2}:{r+3}], v{AH+4*b+t} offset:{o+8192}")
        for j in range(8):
            r = fr + 4 * j
            oo = o + (j >> 2) * 4096
            out.append(f"ds_read_b64_tr_b16 v[{r}:{r+1}], v{AW+4*b+(j&3)} offset:{oo}")
            out.append(f"ds_read_b64_tr_b16 v[{r+2}:{r+3}], v{AW+4*b+(j&3)} offset:{oo+2048}")
        return out
    p("s_barrier")
    if STAGES: tsc(p, 0)
    ts(p, 1, 1)
    if not STAGES: tsc(p, 12)
    for x in reads(0): p(x)
    p("s_waitcnt lgkmcnt(0)")
    for s in range(14):
        pend = []
        p("s_barrier")
        if STAGES: tsc(p, s + 1)
        if s < 13: pend = reads(s + 1)
        else:
            p("v_lshrrev_b32 v4, 4, v2")
            p("v_lshlrev_b32 v4, 4, v4")
            p(f"v_add_u32 v4, {L2_CS}, v4")
            p("v_and_b32 v5, 15, v2")
            p(f"s_lshl_b32 s{S_T0}, s{S_W}, 9")
            p(f"s_add_u32 s{S_T0}, s{S_T0}, {L2_ST}")
            p(f"v_lshl_add_u32 v5, v5, 3, s{S_T0}")
            pend = [f"ds_read_b128 v[{8+4*j}:{11+4*j}], v4 offset:{64*j}" for j in range(8)]
            pend += [f"ds_read_b64 v[{40+2*t}:{41+2*t}], v5 offset:{128*t}" for t in range(4)]
        if s in (0, 1) and "--wdpf" in sys.argv:
            p(f"s_lshl_b32 s{S_T0}, s{S_W}, 7")
            p(f"s_add_u32 s{S_T0}, s{S_T0}, {64*s}")
            p(f"v_add_u32 v4, s{S_T0}, v2")
            p("v_min_u32 v4, 447, v4")
            p(f"s_mul_i32 s{S_T0}, s{S_J}, {448*128}")
            p(f"s_add_u32 s{S_T0}, s{S_T0}, {WS_WDF}")
            p("v_lshlrev_b32 v4, 7, v4")
            p(f"buffer_load_dword v1, v4, s[56:59], s{S_T0} offen")
        fr = FR[s & 1]
        order = [(j, t) for j in range(8) for t in range(4)]
        if s == 13: order = [(j, t) for t in range(4) for J in range(2) for j in (2 * J, 2 * J + 1, 4 + 2 * J, 5 + 2 * J)]
        for (j, t) in order:
            d = ACC + (j * 4 + t) * 4
            p(f"v_mfma_f32_16x16x32_bf16 {vr(d,4)}, {vr(fr+4*j,4)}, {vr(fr+32+4*t,4)}, {'0' if s == 0 else vr(d,4)}")
            if pend: p(pend.pop(0))
        p("s_waitcnt lgkmcnt(0)")
    ts(p, 2, 1)
    if not STAGES: tsc(p, 13)
    p(f"s_lshl_b32 s{S_T0}, s{S_RB}, 4")
    p(f"s_lshl_b32 s{S_T1}, s{S_W}, 2")
    p(f"s_add_u32 s{S_T0}, s{S_T0}, s{S_T1}")
    p(f"s_mul_i32 s{S_T0}, s{S_T0}, {56*1024}")
    p(f"s_lshl_b32 s{S_T1}, s{S_FS}, 11")
    p(f"s_add_u32 s{S_T0}, s{S_T0}, s{S_T1}")
    p(f"s_add_u32 s{S_T0}, s{S_T0}, {WS_HMF}")
    p("v_lshlrev_b32 v4, 4, v2")
    for t in range(4):
        for J in range(2):
            o = 48 + 4 * ((t * 2 + J) % 4)
            for jj in range(2):
                j = 2 * J + jj
                g = ACC + (j * 4 + t) * 4; u = ACC + ((4 + j) * 4 + t) * 4
                for q in range(2):
                    p(f"v_pk_fma_f32 v[{g+2*q}:{g+2*q+1}], v[{8+4*j+2*q}:{8+4*j+2*q+1}], v[{40+2*t}:{41+2*t}], v[{g+2*q}:{g+2*q+1}] op_sel:[0,0,0] op_sel_hi:[1,0,1]")
                    p(f"v_pk_fma_f32 v[{u+2*q}:{u+2*q+1}], v[{24+4*j+2*q}:{24+4*j+2*q+1}], v[{40+2*t}:{41+2*t}], v[{u+2*q}:{u+2*q+1}] op_sel:[0,0,0] op_sel_hi:[1,0,1]")
            for jj in range(2):
                g = ACC + ((2 * J + jj) * 4 + t) * 4
                for r in range(4): p(f"v_max_f32 v{g+r}, 0, v{g+r}")
            for jj in range(2):
                j = 2 * J + jj
                g = ACC + (j * 4 + t) * 4; u = ACC + ((4 + j) * 4 + t) * 4
                for q in range(2):
                    p(f"v_pk_mul_f32 v[{g+2*q}:{g+2*q+1}], v[{g+2*q}:{g+2*q+1}], v[{u+2*q}:{u+2*q+1}]")
            for jj in range(2):
                g = ACC + ((2 * J + jj) * 4 + t) * 4
                p(f"v_cvt_pk_bf16_f32 v{o+2*jj}, v{g}, v{g+1}")
                p(f"v_cvt_pk_bf16_f32 v{o+2*jj+1}, v{g+2}, v{g+3}")
            p(f"s_add_u32 s{S_T1}, s{S_T0}, {t*56*1024 + J*1024}")
            p(f"buffer_store_dwordx4 v[{o}:{o+3}], v4, s[56:59], s{S_T1} offen sc1")
    ts(p, 3, 1)
    p("s_waitcnt vmcnt(0)")
    p(f"s_lshl_b32 s{S_T0}, s{S_W}, 10")
    p(f"v_lshl_add_u32 v4, v2, 4, s{S_T0}")
    p("v_add_u32 v5, 65536, v4")
    p("v_add_u32 v6, 131072, v4")
    p("s_barrier")
    for i in range(28):
        p(f"ds_read_b128 v[{WD+4*i}:{WD+4*i+3}], v{4 + WPOS[i] // 65536} offset:{WPOS[i] % 65536}")
    p("s_branch L_k2_sync")

    p.raw("L_k2_load:")
    p(f"s_sub_u32 s{S_LV}, s{S_W}, 4")
    p("v_lshrrev_b32 v4, 5, v2")
    p("v_bfe_u32 v5, v2, 1, 4")
    p("v_and_b32 v6, 1, v2")
    p(f"s_lshl_b32 s{S_T0}, s{S_LV}, 15")
    p(f"s_lshl_b32 s{S_T1}, s{S_RB}, 9")
    p(f"s_add_u32 s{S_T0}, s{S_T0}, s{S_T1}")
    p(f"s_add_u32 s{S_T0}, s{S_T0}, {WS_HT}")
    for i in range(4):
        p(f"v_add_u32 v7, {2*i}, v4")
        p("v_xor_b32 v125, v7, v5")
        p("v_lshlrev_b32 v125, 5, v125")
        p("v_lshl_add_u32 v125, v6, 4, v125")
        p("v_lshl_add_u32 v125, v7, 12, v125")
        p(f"v_add_u32 v{120+i}, s{S_T0}, v125")
    p("v_lshrrev_b32 v4, 3, v2")
    p("v_bfe_u32 v5, v2, 1, 2")
    p("v_lshrrev_b32 v7, 1, v4")
    p("v_xor_b32 v5, v5, v7")
    p("v_lshlrev_b32 v5, 5, v5")
    p("v_lshl_add_u32 v5, v6, 4, v5")
    p("v_mul_u32_u24 v4, 3584, v4")
    p(f"s_mul_i32 s{S_T0}, s{S_LV}, {8*3584}")
    p(f"s_lshl_b32 s{S_T1}, s{S_FS}, 7")
    p(f"s_add_u32 s{S_T0}, s{S_T0}, s{S_T1}")
    p(f"v_add3_u32 v124, v4, v5, s{S_T0}")
    p(f"s_lshl_b32 s74, s{S_LV}, 12")
    p(f"s_lshl_b32 s75, s{S_LV}, 10")
    def dma(s):
        st = (s % NST) * STG
        p(f"s_mov_b32 s{S_T1}, {s*32*3584}")
        p(f"s_add_u32 m0, s75, {st + 16384}")
        p(f"buffer_load_dwordx4 v124, s[60:63], s{S_T1} offen lds")
        p(f"s_add_u32 m0, s75, {st + 16384 + 4096}")
        p(f"buffer_load_dwordx4 v124, s[64:67], s{S_T1} offen lds")
        p(f"s_mov_b32 s{S_T1}, {s*32*4096}")
        for i in range(4):
            p(f"s_add_u32 m0, s74, {st + 1024*i}")
            p(f"buffer_load_dwordx4 v{120+i}, s[56:59], s{S_T1} offen lds")
    p(f"s_mul_i32 s76, s{S_LV}, 7168")
    p("v_lshl_add_u32 v127, v2, 4, s76")
    def wdl_addr(lv_stride_idx, i):
        return None
    def wdl(lo, hi):
        for i in range(lo, hi):
            ks, j = divmod(i, 4)
            p(f"s_add_u32 s{S_T0}, s{S_A}, {j*57344 + ks*1024}")
            p(f"s_add_u32 m0, s75, {WPOS[i]}")
            p(f"buffer_load_dwordx4 v127, s[56:59], s{S_T0} offen lds")
    q = []
    def dma_l(s): dma(s); q.extend([s] * 6)
    def wait_stage(s):
        last = max(i for i, e in enumerate(q) if e == s)
        p(f"s_waitcnt vmcnt({len(q) - 1 - last})")
    nown = [0]; nlds = [0]
    def extras(n_own, n_lds):
        wd_loads(nown[0], nown[0] + n_own); nown[0] += n_own
        wdl(nlds[0], nlds[0] + n_lds); nlds[0] += n_lds
        q.extend(["x"] * (n_own + n_lds))
    EX = eval(sys.argv[sys.argv.index("--ex") + 1]) if "--ex" in sys.argv else 0
    for s in range(3): dma_l(s)
    ts(p, 1, 1)
    for s in range(11):
        wait_stage(s)
        if STAGES: tsc(p, s)
        p("s_barrier")
        dma_l(s + 3)
        if s >= 4: extras(EX, 0)
    p(f"s_cmp_eq_u32 s{S_LV}, 1")
    p("s_cbranch_scc1 L_k2_x1")
    p("v_cmp_lt_u32 vcc, 31, v2")
    p(f"v_mov_b32 v126, {7168 - 256}")
    p("v_cndmask_b32 v126, 0, v126, vcc")
    p("v_lshl_add_u32 v126, v2, 3, v126")
    p(f"s_lshl_b32 s{S_T1}, s{S_FS}, 8")
    p(f"s_add_u32 s{S_T1}, s{S_T1}, {WS_PCS}")
    p(f"v_add_u32 v126, s{S_T1}, v126")
    for i in range(4):
        p(f"s_mov_b32 s{S_T1}, {i*14336}")
        p(f"buffer_load_dwordx2 v[{128+2*i}:{129+2*i}], v126, s[56:59], s{S_T1} offen")
    p("s_branch L_k2_x2")
    p.raw("L_k2_x1:")
    p(f"s_lshl_b32 s{S_T1}, s{S_RB}, 11")
    p(f"s_add_u32 s{S_T1}, s{S_T1}, {WS_ST2}")
    p(f"v_lshl_add_u32 v126, v2, 3, s{S_T1}")
    for i in range(4):
        p(f"buffer_load_dwordx2 v[{128+2*i}:{129+2*i}], v126, s[56:59], 0 offen offset:{512*i} sc1")
    p.raw("L_k2_x2:")
    q.extend(["r"] * 4)
    for s in range(11, 14):
        wait_stage(s)
        p("s_barrier")
        if STAGES: tsc(p, s)
        extras(0, 8 if s < 13 else 6)
    wait_stage("r")
    p("s_waitcnt lgkmcnt(0)")
    p(f"s_cmp_eq_u32 s{S_LV}, 1")
    p("s_cbranch_scc1 L_k2_y1")
    p(f"s_cmp_lg_u32 s{S_LV}, 0")
    p("s_cbranch_scc1 L_k2_y2")
    p("v_pk_add_f32 v[128:129], v[128:129], v[130:131]")
    p("v_pk_add_f32 v[132:133], v[132:133], v[134:135]")
    p("v_pk_add_f32 v[128:129], v[128:129], v[132:133]")
    p("v_lshlrev_b32 v126, 3, v2")
    p(f"v_add_u32 v126, {L2_CS}, v126")
    p("ds_write_b64 v126, v[128:129]")
    p("s_branch L_k2_y2")
    p.raw("L_k2_y1:")
    p(f"v_xor_b32 v136, s{S_TAG}, v129")
    for r in (131, 133, 135):
        p(f"v_xor_b32 v137, s{S_TAG}, v{r}")
        p("v_or_b32 v136, v136, v137")
    p("v_cmp_ne_u32 vcc, 0, v136")
    p("s_cbranch_vccz L_k2_y1ok")
    for i in range(4):
        p(f"buffer_load_dwordx2 v[{128+2*i}:{129+2*i}], v126, s[56:59], 0 offen offset:{512*i} sc1")
    p("s_waitcnt vmcnt(0)")
    p("s_branch L_k2_y1")
    p.raw("L_k2_y1ok:")
    p("v_lshlrev_b32 v126, 3, v2")
    p(f"v_add_u32 v126, {L2_ST}, v126")
    for i in range(4):
        r = 128 + 2 * i
        p(f"v_and_b32 v{r+1}, 0xffff0000, v{r}")
        p(f"v_mul_f32 v{r+1}, v{r+1}, v{r+1}")
        p(f"v_rcp_f32 v{r+1}, v{r+1}")
        p(f"v_lshlrev_b32 v{r}, 16, v{r}")
        p(f"v_xor_b32 v{r}, 0x80000000, v{r}")
        p(f"ds_write_b64 v126, v[{r}:{r+1}] offset:{512*i}")
    p.raw("L_k2_y2:")
    p("s_waitcnt lgkmcnt(0)")
    p("s_barrier")
    extras(0, 28 - nlds[0])
    PRE = int(sys.argv[sys.argv.index("--pre") + 1]) if "--pre" in sys.argv else 6
    extras(PRE, 0)
    p(f"s_cmp_lg_u32 s{S_W}, 7")
    p("s_cbranch_scc1 L_k2_w7a")
    wd_loads(nown[0], 28)
    p.raw("L_k2_w7a:")
    p(f"s_waitcnt vmcnt({PRE})")
    ts(p, 3, 1)

    p(f"s_lshl_b32 s{S_T0}, s{S_RB}, 12")
    p(f"s_lshl_b32 s{S_T1}, s{S_FS}, 7")
    p(f"s_add_u32 s{S_T1}, s{S_T1}, s{S_T0}")
    p(f"s_add_u32 s{S_T1}, s{S_T1}, {WS_FLG}")
    p(f"v_mov_b32 v120, s{S_T1}")
    p(f"v_mov_b32 v121, s{S_TAG}")
    p("s_barrier")
    p(f"s_cmp_lg_u32 s{S_W}, 7")
    p("s_cbranch_scc1 L_k2_w7b")
    p("s_mov_b64 exec, 1")
    p("buffer_store_dword v121, v120, s[56:59], 0 offen sc1")
    p("s_mov_b64 exec, -1")
    p("s_branch L_k2_sync")
    p.raw("L_k2_w7b:")
    p("s_sleep 2")
    wd_loads(nown[0], 28)
    p.raw("L_k2_sync:")
    ts(p, 4, 1)
    p("v_and_b32 v4, 15, v2")
    p("v_lshrrev_b32 v5, 4, v2")
    p(f"s_lshr_b32 s{S_T0}, s{S_W}, 1")
    p(f"s_lshl_b32 s{S_T0}, s{S_T0}, 4")
    p(f"s_lshr_b32 s{S_T1}, s{S_J}, 2")
    p(f"s_lshl_b32 s{S_T1}, s{S_T1}, 6")
    p(f"s_add_u32 s68, s{S_T0}, s{S_T1}")
    p(f"s_and_b32 s{S_T0}, s{S_W}, 1")
    p(f"s_lshl_b32 s{S_T0}, s{S_T0}, 4")
    p(f"s_and_b32 s{S_T1}, s{S_J}, 3")
    p(f"s_lshl_b32 s{S_T1}, s{S_T1}, 6")
    p(f"s_add_u32 s69, s{S_T0}, s{S_T1}")
    p(f"s_lshl_b32 s{S_T0}, s{S_X}, 8")
    p(f"s_add_u32 s69, s69, s{S_T0}")
    p("v_add_u32 v6, s69, v4")
    p("v_lshl_add_u32 v7, v5, 2, s68")
    p("v_lshlrev_b32 v121, 12, v7")
    p("v_lshl_add_u32 v121, v6, 1, v121")
    p(f"v_add_u32 v121, {WS_HT}, v121")
    p("v_mul_u32_u24 v122, 896, v6")
    p("v_lshl_add_u32 v122, v7, 1, v122")
    p("v_lshlrev_b32 v0, 3, v6")
    p(f"v_add_u32 v0, {WS_ST2}, v0")
    p(f"s_lshl_b32 s{S_T0}, s{S_W}, 13")
    p(f"v_lshl_add_u32 v125, v2, 4, s{S_T0}")
    p("v_add_u32 v127, 65536, v125")
    p(f"s_lshl_b32 s{S_T0}, s{S_W}, 10")
    p(f"v_lshl_add_u32 v126, v2, 4, s{S_T0}")
    p("v_add_u32 v120, 65536, v126")
    p(f"s_cmp_lg_u32 s{S_W}, 7")
    p("s_cbranch_scc1 L_k2_nopoll")
    p(f"s_lshl_b32 s{S_T0}, s{S_X}, 12")
    p(f"s_add_u32 s{S_T0}, s{S_T0}, {WS_FLG}")
    p("v_min_u32 v4, 27, v2")
    p(f"v_lshl_add_u32 v4, v4, 7, s{S_T0}")
    p.raw("L_k2_poll:")
    p("buffer_load_dword v5, v4, s[56:59], 0 offen sc1")
    p("s_waitcnt vmcnt(0)")
    p(f"v_cmp_ne_u32 vcc, s{S_TAG}, v5")
    p("s_cbranch_vccnz L_k2_poll")
    p.raw("L_k2_nopoll:")
    RES = 4
    p("s_waitcnt lgkmcnt(0)")
    p("s_barrier")
    ts(p, 5, 1)
    if not STAGES: tsc(p, 14)
    HM = 128; NSET = 4
    AC2 = 192
    def hm_loads(ks):
        for t in range(4):
            r = HM + (ks % NSET) * 16 + 4 * t
            p(f"s_add_u32 s{S_T0}, s{S_B}, {t*57344 + ks*1024}")
            p(f"buffer_load_dwordx4 v[{r}:{r+3}], v3, s[56:59], s{S_T0} offen sc1")
    for ks in range(NSET): hm_loads(ks)
    issued = NSET
    RES2 = 176
    for ks in range(7):
        p(f"s_waitcnt vmcnt({4*(issued-ks-1) + (10 if ks > 3 else 0)})")
        for t in range(4):
            for j in range(4):
                d = AC2 + ((t >> 1) * 8 + j * 2 + (t & 1)) * 4
                p(f"v_mfma_f32_16x16x32_bf16 {vr(d,4)}, {vr(WD+(ks*4+j)*4,4)}, {vr(HM+(ks%NSET)*16+4*t,4)}, {'0' if ks == 0 else vr(d,4)}")
        if issued < 7:
            hm_loads(issued); issued += 1
        if ks == 3:
            for h in range(2):
                for r in range(4):
                    p(f"s_mov_b32 s{S_T0}, {4096*r + 64*h}")
                    p(f"buffer_load_ushort v{RES2+4*h+r}, v121, s[56:59], s{S_T0} offen")
            p("buffer_load_dword v123, v0, s[56:59], 0 offen sc1")
            p("buffer_load_dword v124, v0, s[56:59], 0 offen offset:256 sc1")
    ts(p, 6, 1)
    for h in range(2):
        for i in range(8):
            p(f"ds_write_b128 v{125 if h == 0 else 127}, v[{AC2+32*h+4*i}:{AC2+32*h+4*i+3}] offset:{1024*i}")
    def finish(h, b):
        for st in (4, 2, 1):
            for i in range(st):
                if st == 4: p(f"s_waitcnt lgkmcnt({3 - i + (8 if h == 0 else 0)})")
                for q_ in range(2):
                    x = b + 4 * i + 2 * q_; y = b + 4 * (i + st) + 2 * q_
                    p(f"v_pk_add_f32 v[{x}:{x+1}], v[{x}:{x+1}], v[{y}:{y+1}]")
        for r in range(4): p(f"v_mul_f32 v{b+r}, v{123+h}, v{b+r}")
        p(f"v_cvt_pk_bf16_f32 v{b+4}, v{b}, v{b+1}")
        p(f"v_cvt_pk_bf16_f32 v{b+5}, v{b+2}, v{b+3}")
        for r in range(4):
            src = b + 4 + r // 2
            p(f"v_lshlrev_b32 v{b+r}, 16, v{src}" if r % 2 == 0 else f"v_and_b32 v{b+r}, 0xffff0000, v{src}")
        for r in range(4): p(f"v_add_f32 v{b+r}, v{b+r}, v{RES2+4*h+r}")
        p(f"v_cvt_pk_bf16_f32 v{b+4}, v{b}, v{b+1}")
        p(f"v_cvt_pk_bf16_f32 v{b+5}, v{b+2}, v{b+3}")
        if h == 1: p(f"v_add_u32 v122, {32*896}, v122")
        p(f"global_store_dwordx2 v122, v[{b+4}:{b+5}], {sp(P_OUT)}")
    p("s_waitcnt vmcnt(0)")
    for r in (123, 124):
        p(f"v_and_b32 v{r}, 0xffff0000, v{r}")
        p(f"v_mul_f32 v{r}, v{r}, v{r}")
        p(f"v_rcp_f32 v{r}, v{r}")
    for r in range(8): p(f"v_lshlrev_b32 v{RES2+r}, 16, v{RES2+r}")
    p("s_waitcnt lgkmcnt(0)")
    p("s_barrier")
    for h in range(2):
        for src in range(8):
            r = 8 + h * 32 + src * 4
            p(f"ds_read_b128 v[{r}:{r+3}], v{126 if h == 0 else 120} offset:{src * 8192}")
    finish(0, 8)
    finish(1, 40)
    ts(p, 7, 1)
    if not STAGES: tsc(p, 15)
    if "--dbgtime" in sys.argv:
        p("s_memrealtime s[96:97]")
        p("s_waitcnt lgkmcnt(0)")
        p("s_sub_u32 s96, s96, s99")
        p("v_mov_b32 v0, 0")
        p("v_mov_b32 v1, s96")
        p("v_mov_b32 v2, s98")
        p("s_mov_b64 exec, 1")
        p(f"global_atomic_umax v0, v1, {sp(P_DBG)}")
        p(f"global_atomic_umax v0, v2, {sp(P_DBG)} offset:4")
    ts_flush(p, 1, P_WS, S_W)
    p("s_endpgm")

    p.raw("L_k2_aux:")
    p(f"s_sub_u32 s{S_T0}, s{S_J}, 28")
    p(f"s_lshl_b32 s{S_T0}, s{S_T0}, 6")
    p(f"s_lshl_b32 s{S_T1}, s{S_X}, 8")
    p(f"s_add_u32 s{S_T2}, s{S_T0}, s{S_T1}")
    p(f"s_lshl_b32 s{S_T0}, s{S_T2}, 1")
    p(f"s_add_u32 s{S_T0}, s{S_T0}, {WS_HT}")
    p("v_and_b32 v3, 7, v0")
    p("v_lshrrev_b32 v4, 3, v0")
    p(f"v_mul_u32_u24 v5, {7*4096}, v4")
    p("v_lshl_add_u32 v5, v3, 4, v5")
    p(f"v_add_u32 v5, s{S_T0}, v5")
    for i in range(7):
        p(f"s_mov_b32 s{S_T1}, {4096*i}")
        p(f"buffer_load_dwordx4 v[{8+4*i}:{11+4*i}], v5, s[56:59], s{S_T1} offen")
    for i in range(16): p(f"v_mov_b32 v{48+i}, 0")
    for i in range(7):
        p(f"s_waitcnt vmcnt({6-i})")
        for k in range(4):
            p(f"v_lshlrev_b32 v{40+2*k}, 16, v{8+4*i+k}")
            p(f"v_and_b32 v{41+2*k}, 0xffff0000, v{8+4*i+k}")
        for k in range(4):
            p(f"v_pk_add_f32 v[{48+2*k}:{49+2*k}], v[{48+2*k}:{49+2*k}], v[{40+2*k}:{41+2*k}]")
            p(f"v_pk_fma_f32 v[{56+2*k}:{57+2*k}], v[{40+2*k}:{41+2*k}], v[{40+2*k}:{41+2*k}], v[{56+2*k}:{57+2*k}]")
    for i in range(16):
        p(f"v_add_f32_dpp v{48+i}, v{48+i}, v{48+i} row_ror:8 row_mask:0xf bank_mask:0xf")
    p("v_lshrrev_b32 v6, 4, v0")
    p("v_lshlrev_b32 v6, 9, v6")
    p("v_lshl_add_u32 v6, v3, 6, v6")
    for i in range(4): p(f"ds_write_b128 v6, v[{48+4*i}:{51+4*i}] offset:{16*i}")
    p("s_waitcnt lgkmcnt(0)")
    p("s_barrier")
    p(f"s_cmp_lg_u32 s{S_W}, 0")
    p(f"s_cbranch_scc1 L_{name}_exit")
    p("v_lshrrev_b32 v6, 3, v2")
    p("v_lshlrev_b32 v6, 6, v6")
    p("v_and_b32 v7, 7, v2")
    p("v_lshl_add_u32 v6, v7, 2, v6")
    for g in range(32):
        if g % 2 == 0 and g: p("v_add_u32 v6, 1024, v6")
        p(f"ds_read2_b32 v[{8+2*g}:{9+2*g}], v6 offset0:{(g%2)*128} offset1:{(g%2)*128+8}")
    p("s_waitcnt lgkmcnt(0)")
    for g in range(2, 32):
        a = 8 + 2 * (g & 1)
        p(f"v_pk_add_f32 v[{a}:{a+1}], v[{a}:{a+1}], v[{8+2*g}:{9+2*g}]")
    p("v_pk_add_f32 v[8:9], v[8:9], v[10:11]")
    ln_finish(p, 8, 9, 10)
    p(f"v_mov_b32 v11, s{S_TAG}")
    p(f"s_lshl_b32 s{S_T0}, s{S_T2}, 3")
    p(f"s_add_u32 s{S_T0}, s{S_T0}, {WS_ST2}")
    p(f"v_lshl_add_u32 v6, v2, 3, s{S_T0}")
    p("buffer_store_dwordx2 v[10:11], v6, s[56:59], 0 offen sc1")
    ts(p, 7, 1)
    ts_flush(p, 1, P_WS, S_W)
    p.raw(f"L_{name}_exit:")
    p("s_endpgm")

def launches(): return [("k2_kernel", 256, 512, L2_END)]
def gen():
    p = Prog(); gen_k2(p); t = p.render()
    return t, kd("k2_kernel", 256, 102)
```

```python
import sys, struct
import numpy as np
from asmgen import *

NAME = "sequential_preLN__ssm_conv_s4__glu_gated_reglu__prompt"
DIAG = "--diag" in sys.argv

WS_EPOCH = 0
WS_ST1 = 0x1000
WS_ST2 = 0x6000
WS_CS = 0xB000
WS_HT = 0x10000
WS_WDF = 0x200000
WS_HMF = 0x400000
WS_PCS = 0xB00000
WS_TS = 0xC00000
WS_XT = 0x1000000
WS_FLG = 0xB40000
WS_SIZE = 0x1400000

def f32(x): return struct.unpack("<I", struct.pack("<f", x))[0]
def hx(x): return "0x%08x" % x
LOG2E = 1.4426950408889634
L2E_HI = float(np.float32(LOG2E)); L2E_LO = float(np.float32(LOG2E - L2E_HI))

def bf16_round_int(l):
    u = np.float32(l).view(np.uint32)
    r = ((int(u) + 0x7FFF + ((int(u) >> 16) & 1)) >> 16) << 16
    return int(np.uint32(r).view(np.float32))

HI0 = [1, 2, 3, 4, 5, 6, 7, 8, 258, 260, 262, 264, 516, 520, 772, 776]
HI1 = [1032, 1288, 1544, 1800, 0]
def kacc_addr(t):
    cands = []
    for Mt, rows in ((0, HI0), (1, HI1)):
        for row, hi in enumerate(rows):
            if t >= hi and (t - hi) % 8 == 0 and (t - hi) // 8 < 32:
                q = (t - hi) // 8
                cands.append((Mt * 2 + (q >> 4)) * 1024 + (row & 3) * 256 + ((row >> 2) * 16 + (q & 15)) * 4)
    assert cands, t
    return cands[0]
def gather_table():
    tab = []
    for x in range(2048 + 8):
        tab.append(kacc_addr(bf16_round_int(2047 - x)) if x <= 2047 else 4096)
    return tab

TPITCH = 1040
TB = 55120
L_TAB = 0
L_PX = 0
L_KACC = 2 * TB
KACC_CH = 4096 + 64
L_KE = L_KACC + 2 * KACC_CH
KCOPY = 4096 + 64 + 64
KE_CH = 2 * KCOPY
L_U = L_KE + 2 * KE_CH
U_CH = 512 + 4096
L_X = L_U + 2 * U_CH
XRP = 912
L_XR = L_X + 2 * 4096
L_K1_END = L_XR + 8192
assert L_KACC % 16 == 0 and L_KE % 16 == 0 and L_U % 16 == 0 and L_X % 16 == 0
assert L_K1_END <= 163840, L_K1_END
O_OFF = 4096 + 64
assert (O_OFF // 4) % 32 == 16 and O_OFF + 4096 + 64 <= KE_CH

WTAB_NAMES = ["m0", "tb", "ta", "pxw", "pxr", "kw", "ke", "va", "vb", "xr", "ht", "ur", "hx", "hs", "uw", "wdl", "wds", "kacc", "wdm0"]
WTAB_OFF = 4224
def wave_table(w):
    ch, v = w >> 2, w & 3
    tb = ch * TB
    w6 = min(w, 6)
    d = dict(m0=tb + 256 * v, tb=tb + (v & 1) * 16 * TPITCH, ta=tb + (32 + (v >> 1) * 16) * TPITCH, pxw=tb + v * 8192, pxr=tb + v * 2048,
             kw=L_KACC + ch * KACC_CH + v * 1024, ke=L_KE + ch * KE_CH + v * 1024, va=L_KE + ch * KE_CH - 128 * v - 576,
             vb=L_U + 512 + ch * U_CH - 128 * v - 96, xr=L_X + ch * 4096 + 1024 * v, ht=WS_HT + ch * 4096 + 1024 * v,
             ur=L_U + 512 + ch * U_CH + 1024 * v, hx=WS_XT + w * 32 * 14336, hs=WS_ST1 + w * 2048, uw=L_U + 512 + 512 * w,
             wdl=L_XR + 32 * w6, wds=WS_WDF + w6 * 56 * 1024, kacc=L_KACC + ch * KACC_CH, wdm0=L_XR + 1024 * w)
    return [d[n] for n in WTAB_NAMES] + [0] * (32 - len(WTAB_NAMES))

def cmul(p, d, a, b, conj=False, tmp=None):
    t = tmp if tmp is not None else d
    p(f"v_pk_mul_f32 {vr(t,2)}, {vr(a,2)}, {vr(b,2)} op_sel:[0,0] op_sel_hi:[1,0]")
    neg = "neg_hi" if conj else "neg_lo"
    p(f"v_pk_fma_f32 {vr(d,2)}, {vr(a,2)}, {vr(b,2)}, {vr(t,2)} op_sel:[1,1,0] op_sel_hi:[0,1,1] {neg}:[1,0,0]")

def ts(p, slot, kern, sreg=96):
    if not DIAG: return
    p(f"s_memrealtime s[{sreg}:{sreg+1}]")
    p("s_waitcnt lgkmcnt(0)")
    p(f"s_mov_b32 s{80+slot}, s{sreg}")

def tsc(p, slot, sreg=96):
    if not DIAG: return
    p(f"s_memtime s[{sreg}:{sreg+1}]")
    p("s_waitcnt lgkmcnt(0)")
    p(f"s_mov_b32 s{80+slot}, s{sreg}")

def ts_init(p):
    if not DIAG: return
    for i in range(16): p(f"s_mov_b32 s{80+i}, 0")

def ts_flush(p, kern, ws_pair, wave_sreg):
    if not DIAG: return
    p("s_nop 7\ns_nop 7")
    for i in range(16): p(f"v_writelane_b32 v1, s{80+i}, {i}")
    p(f"s_lshl_b32 s96, s2, 3")
    p(f"s_add_u32 s96, s96, s{wave_sreg}")
    p(f"s_lshl_b32 s96, s96, 6")
    p(f"s_add_u32 s96, s96, {WS_TS + kern * 0x40000}")
    p(f"v_mbcnt_lo_u32_b32 v0, -1, 0")
    p(f"v_mbcnt_hi_u32_b32 v0, -1, v0")
    p(f"v_lshl_add_u32 v0, v0, 2, s96")
    p(f"s_mov_b64 exec, 0xffff")
    p(f"global_store_dword v0, v1, s[{ws_pair}:{ws_pair+1}]")
    p(f"s_mov_b64 exec, -1")

P_X, P_ARE, P_AIM, P_BRE, P_BIM, P_CRE, P_CIM, P_LDT = [16 + 2 * i for i in range(8)]
P_DSK, P_BX, P_WG, P_WU, P_WD, P_OUT, P_DBG, P_WS = [32 + 2 * i for i in range(8)]
def sp(b): return f"s[{b}:{b+1}]"

def prologue(p, name, nwg):
    p.raw(f".globl {name}\n.p2align 8\n.type {name},@function\n{name}:")
    p(f"s_cmp_ge_u32 s2, {nwg}")
    p(f"s_cbranch_scc1 L_{name}_exit")
    p("s_load_dwordx16 s[16:31], s[0:1], 0")
    p("s_load_dwordx16 s[32:47], s[0:1], 64")
    ts_init(p)

def wave_red(p, regs):
    for mod in ("quad_perm:[1,0,3,2] row_mask:0xf", "quad_perm:[2,3,0,1] row_mask:0xf", "row_half_mirror row_mask:0xf",
                "row_mirror row_mask:0xf", "row_bcast:15 row_mask:0xa", "row_bcast:31 row_mask:0xc"):
        for r in regs:
            p(f"v_add_f32_dpp v{r}, v{r}, v{r} {mod} bank_mask:0xf")

def ln_finish(p, sm, sq, dst):
    p(f"v_mul_f32 v{sm}, {hx(f32(1.0/448))}, v{sm}")
    p(f"v_mul_f32 v{sq}, {hx(f32(1.0/448))}, v{sq}")
    p(f"v_fma_f32 v{sq}, -v{sm}, v{sm}, v{sq}")
    p(f"v_max_f32 v{sq}, 0, v{sq}")
    p(f"v_cvt_pk_bf16_f32 v{sq}, v{sq}, v{sq}")
    p(f"v_lshlrev_b32 v{sq}, 16, v{sq}")
    p(f"v_add_f32 v{sq}, {hx(f32(1e-5))}, v{sq}")
    p(f"v_cvt_pk_bf16_f32 v{sq}, v{sq}, v{sq}")
    p(f"v_lshlrev_b32 v{sq}, 16, v{sq}")
    p(f"v_sqrt_f32 v{sq}, v{sq}")
    p(f"v_cvt_pk_bf16_f32 v{dst}, v{sm}, v{sq}")

def gen_k1(p):
    name = "k1_kernel"
    prologue(p, name, 256)
    S_W, S_CH, S_V, S_CP, S_D, S_TAG, S_T0, S_T1, S_T2, S_LDT, S_DSK = 48, 49, 50, 51, 52, 53, 54, 55, 56, 57, 58
    VTA, VTB, VKW, VKE, VB, VHX, VHX2, VHS, VUW, VPXW, VPXR, VUR, VXR, VHT, VWDG, VWDL, VWDS, VPF = range(224, 242)
    VA = 242
    GA = 246
    p("s_getpc_b64 s[60:61]")
    p.raw("L_k1_pc0:")
    p("v_lshrrev_b32 v1, 6, v0")
    p("v_and_b32 v2, 63, v0")
    p(f"v_readfirstlane_b32 s{S_W}, v1")
    p("v_min_u32 v3, 55, v2")
    p("s_lshl_b32 s62, s2, 3")
    p(f"s_add_u32 s62, s62, s{S_W}")
    p("s_mul_i32 s63, s62, 896")
    p("v_lshl_add_u32 v6, v3, 4, s63")
    p(f"s_and_b32 s{S_T0}, s2, 7")
    p(f"s_lshr_b32 s{S_T1}, s2, 3")
    p(f"s_min_u32 s{S_T2}, s{S_T1}, 27")
    p(f"s_mul_i32 s{S_CP}, s{S_T0}, 28")
    p(f"s_add_u32 s{S_CP}, s{S_CP}, s{S_T2}")
    p(f"s_lshl_b32 s63, s{S_CP}, 10")
    p("v_lshl_add_u32 v4, v0, 1, s63")
    p("v_lshlrev_b32 v1, 7, v0")
    p("v_min_u32 v1, k1_code_end-L_k1_pc0-4, v1")
    p("s_mov_b64 s[12:13], s[60:61]")
    p("s_add_u32 s60, s60, k1_gtab-L_k1_pc0")
    p("s_addc_u32 s61, s61, 0")
    p(f"s_lshl_b32 s63, s{S_W}, 7")
    p("s_add_u32 s64, s60, s63")
    p("s_addc_u32 s65, s61, 0")
    p("s_waitcnt lgkmcnt(0)")
    VR = 16
    VP = 8
    p(f"global_load_dwordx4 v[{VR}:{VR+3}], v6, {sp(P_X)}")
    p(f"s_load_dword s{S_TAG}, {sp(P_WS)}, {WS_EPOCH}")
    if "--nob0" not in sys.argv: p("s_barrier")
    p("global_load_dword v25, v1, s[12:13]")
    for i, ptr in enumerate((P_ARE, P_AIM, P_BRE, P_BIM, P_CRE, P_CIM)):
        p(f"global_load_ushort v{VP+i}, v4, {sp(ptr)}")
    p(f"s_lshl_b32 s63, s{S_CP}, 2")
    p(f"s_load_dword s{S_LDT}, {sp(P_LDT)}, s63")
    p(f"s_load_dword s{S_DSK}, {sp(P_DSK)}, s63")
    p(f"s_load_dwordx8 s[4:11], s[64:65], {WTAB_OFF + 64}")
    p("v_and_b32 v5, 255, v0")
    p("v_lshlrev_b32 v5, 4, v5")
    VG = 20
    p(f"global_load_dwordx4 v[{VG}:{VG+3}], v5, s[60:61]")
    p(f"global_load_ushort v{VG+4}, v5, s[60:61] offset:16")
    p(f"s_load_dwordx16 s[76:91], s[64:65], {WTAB_OFF}" if not DIAG else f"s_load_dwordx16 s[16:31], s[64:65], {WTAB_OFF}")
    W = {n: ((76 if not DIAG else 16) + i if i < 16 else 4 + i - 16) for i, n in enumerate(WTAB_NAMES)}
    ts(p, 0, 0)
    p(f"s_lshr_b32 s{S_CH}, s{S_W}, 2")
    p(f"s_mul_i32 s63, s{S_W}, {XRP}")
    p(f"s_add_u32 s63, s63, {L_XR}")
    p("v_lshl_add_u32 v27, v3, 4, s63")
    p("v_and_b32 v37, 3, v2")
    p(f"v_mul_u32_u24 v31, {2*XRP}, v37")
    p(f"v_add_u32 v31, {L_XR}, v31")
    p("v_and_b32 v29, -4, v0")
    p("v_add_u32 v28, v31, v29")
    p("v_min_u32 v29, 384, v29")
    p("v_add_u32 v26, v31, v29")
    p("s_lshr_b32 s63, s2, 1")
    p("s_mul_i32 s63, s63, 28672")
    p("s_and_b32 s62, s2, 1")
    p("s_lshl_b32 s62, s62, 6")
    p("s_add_u32 s63, s63, s62")
    p(f"s_add_u32 s63, s63, {WS_XT}")
    p("v_and_b32 v29, -4, v0")
    p("v_lshlrev_b32 v29, 5, v29")
    p("v_lshl_add_u32 v29, v37, 4, v29")
    p("v_add_u32 v29, s63, v29")
    p("s_lshl_b32 s62, s2, 6")
    p(f"s_add_u32 s62, s62, {WS_ST1}")
    p("v_lshl_add_u32 v30, v37, 4, s62")
    p("v_add_u32 v31, 16384, v29")
    p("v_cmp_gt_u32 vcc, 384, v0")
    p("v_cndmask_b32 v30, v30, v31, vcc")
    p("v_mov_b32 v31, 0x3f803f80")
    p("v_mov_b32 v60, 0\nv_mov_b32 v61, 0\nv_mov_b32 v62, 0\nv_mov_b32 v63, 0")
    p("v_lshlrev_b32 v32, 4, v2")
    p(f"v_add_u32 v35, {L_KACC}, v32")
    p(f"s_cmp_lg_u32 s{S_W}, 7")
    p("s_cbranch_scc1 L_k1_nozero")
    p("s_mov_b64 exec, 0xf")
    for ch in range(2):
        p(f"ds_write_b128 v35, v[60:63] offset:{ch*KACC_CH + 4096}")
        for cp_off in (0, O_OFF):
            p(f"ds_write_b128 v35, v[60:63] offset:{L_KE - L_KACC + ch*KE_CH + cp_off + 4096}")
    p("s_mov_b32 exec_lo, -1")
    for ch in range(2):
        p(f"ds_write_b128 v35, v[60:63] offset:{L_U - L_KACC + ch*U_CH}")
    p("s_mov_b64 exec, -1")
    p.raw("L_k1_nozero:")
    p("v_and_b32 v33, 15, v2")
    p("v_lshrrev_b32 v34, 4, v2")
    p(f"v_mul_u32_u24 v{VTA}, {TPITCH}, v33")
    p(f"v_lshl_add_u32 v{VTA}, v34, 8, v{VTA}")
    p("v_lshlrev_b32 v35, 3, v34")
    p("v_sub_u32 v35, v35, v33")
    p("v_add_u32 v35, 2031, v35")
    p("v_and_b32 v36, 1, v35")
    p("v_and_b32 v35, -2, v35")
    p(f"v_mul_u32_u24 v36, {O_OFF}, v36")
    p(f"v_lshl_add_u32 v{VA}, v35, 1, v36")
    p("v_lshlrev_b32 v36, 5, v33")
    p(f"v_lshl_add_u32 v{VB}, v34, 4, v36")
    p(f"v_lshl_add_u32 v{VUR}, v34, 3, v36")
    p("v_lshrrev_b32 v35, 2, v2")
    p("v_lshrrev_b32 v36, 3, v2")
    p("v_mul_u32_u24 v36, 28672, v36")
    p("v_and_b32 v38, 7, v2")
    p(f"v_lshl_add_u32 v{VHX}, v38, 4, v36")
    p("v_mul_u32_u24 v36, 224, v35")
    p(f"v_lshl_add_u32 v{VWDL}, v37, 3, v36")
    assert all(((q * 4682) >> 16) == q // 14 for q in range(512))
    p("v_min_u32 v15, 447, v0")
    p("v_mul_u32_u24 v36, 4682, v15")
    p("v_lshrrev_b32 v36, 16, v36")
    p(f"v_mul_u32_u24 v36, {896 - 14*16}, v36")
    p(f"v_lshl_add_u32 v{VWDG}, v15, 4, v36")
    p(f"s_mov_b32 s72, s{P_WD}\ns_mov_b32 s73, s{P_WD+1}\ns_mov_b32 s74, {1792*896}\ns_mov_b32 s75, 0x00020000")
    p(f"s_lshr_b32 s64, s{S_CP}, 2")
    p(f"s_and_b32 s66, s{S_CP}, 3")
    p(f"s_mul_i32 s70, s64, {32*896}")
    p("s_mul_i32 s67, s66, 224")
    p("s_add_u32 s70, s70, s67")
    p(f"s_mul_i32 s66, s66, {7*56}")
    p("s_add_u32 s66, s66, s64")
    p("s_lshl_b32 s66, s66, 10")
    p(f"s_lshl_b32 s64, s{S_CP}, 7")
    p(f"s_lshl_b32 s65, s{S_CP}, 13")
    p("v_cmp_lt_u32 vcc, 6, v2")
    p(f"v_mov_b32 v36, {3584 - 896}")
    p("v_cndmask_b32 v36, 0, v36, vcc")
    p("v_lshl_add_u32 v36, v2, 7, v36")
    p(f"s_lshl_b32 s67, s{S_T2}, 3")
    p(f"s_add_u32 s67, s67, s{S_W}")
    p(f"s_mul_i32 s67, s67, {2*3584}")
    p(f"s_and_b32 s71, s2, 3")
    p("s_mul_i32 s71, s71, 896")
    p("s_add_u32 s67, s67, s71")
    p(f"v_add_u32 v{VPF}, s67, v36")
    p("v_cmp_gt_u32 vcc, 56, v2")
    p("s_waitcnt lgkmcnt(0)")
    p(f"s_add_u32 s{S_TAG}, s{S_TAG}, 2")
    p(f"s_or_b32 s{S_TAG}, s{S_TAG}, 1")
    for r in (41, 43, 45, 47): p(f"v_mov_b32 v{r}, s{S_TAG}")
    p(f"s_mov_b32 m0, s{W['m0']}")
    p(f"v_add_u32 v{VTB}, s{W['tb']}, v{VTA}")
    p(f"v_add_u32 v{VTA}, s{W['ta']}, v{VTA}")
    p(f"v_add_u32 v{VPXW}, s{W['pxw']}, v32")
    p(f"v_add_u32 v{VPXR}, s{W['pxr']}, v32")
    p(f"v_lshl_add_u32 v{VKW}, v2, 2, s{W['kw']}")
    p(f"v_add_u32 v{VKE}, s{W['ke']}, v32")
    p(f"v_add_u32 v{VA}, s{W['va']}, v{VA}")
    for k in range(1, 4): p(f"v_subrev_u32 v{VA+k}, {1024*k}, v{VA}")
    p(f"v_add_u32 v{VB}, s{W['vb']}, v{VB}")
    p(f"v_add_u32 v{VXR}, s{W['xr']}, v{VUR}")
    p(f"s_add_u32 s65, s65, s{W['ht']}")
    p(f"v_add_u32 v{VHT}, s65, v{VUR}")
    p(f"v_add_u32 v{VUR}, s{W['ur']}, v{VUR}")
    p(f"s_add_u32 s64, s64, s{W['hx']}")
    p(f"v_add_u32 v{VHX}, s64, v{VHX}")
    p(f"v_add_u32 v{VHX2}, {16*14336}, v{VHX}")
    p(f"v_add_u32 v{VHS}, s{W['hs']}, v32")
    p(f"v_lshl_add_u32 v{VUW}, v2, 2, s{W['uw']}")
    p(f"v_add_u32 v{VWDL}, s{W['wdl']}, v{VWDL}")
    p(f"s_add_u32 s66, s66, s{W['wds']}")
    p(f"v_add_u32 v{VWDS}, s66, v32")
    p(f"s_mov_b32 s68, s{W['kacc']}")
    p(f"s_mov_b32 s69, s{W['wdm0']}")
    p("s_waitcnt vmcnt(9)")
    ts(p, 1, 0)
    p(f"ds_write_b128 v27, v[{VR}:{VR+3}]")
    for i in range(4): p(f"v_cndmask_b32 v{VR+i}, 0, v{VR+i}, vcc")
    p(f"v_dot2_f32_bf16 v48, v{VR}, v31, 0")
    p(f"v_dot2_f32_bf16 v49, v{VR}, v{VR}, 0")
    for i in range(1, 4):
        p(f"v_dot2_f32_bf16 v48, v{VR+i}, v31, v48")
        p(f"v_dot2_f32_bf16 v49, v{VR+i}, v{VR+i}, v49")
    p("s_nop 2")
    wave_red(p, (48, 49))
    ln_finish(p, 48, 49, 50)
    p("s_mov_b32 exec_lo, 0")
    p("s_mov_b32 exec_hi, 0x80000000")
    p("ds_write_b32 v27, v50 offset:16")
    p("s_mov_b64 exec, -1")
    p("s_waitcnt lgkmcnt(0)")
    p("s_barrier")
    p("ds_read_b32 v40, v28")
    p(f"ds_read_b32 v42, v28 offset:{XRP}")
    p("ds_read_b32 v44, v26 offset:512")
    p(f"ds_read_b32 v46, v26 offset:{XRP+512}")
    p(f"s_lshl_b32 s63, s{S_CH}, 4")
    p(f"s_lshr_b32 s{S_LDT}, s{S_LDT}, s63")
    p(f"s_lshl_b32 s{S_LDT}, s{S_LDT}, 16")
    p(f"s_lshr_b32 s{S_DSK}, s{S_DSK}, s63")
    p(f"s_lshl_b32 s{S_DSK}, s{S_DSK}, 16")
    p(f"v_mov_b32 v36, s{S_LDT}")
    p(f"v_mov_b32 v37, {hx(f32(L2E_HI))}")
    p("v_mul_f32 v38, v36, v37")
    p("v_fma_f32 v39, v36, v37, -v38")
    p("s_waitcnt lgkmcnt(2)")
    p(f"global_store_dwordx4 v29, v[40:43], {sp(P_WS)} sc1")
    p("s_waitcnt lgkmcnt(0)")
    p(f"global_store_dwordx4 v30, v[44:47], {sp(P_WS)} sc1")
    p(f"s_cmp_ge_u32 s{S_T1}, 28")
    p("s_cbranch_scc1 L_k1_aux")
    p(f"s_cmp_eq_u32 s{S_CH}, 0")
    p("s_cbranch_scc0 L_k1_lowprio")
    p("s_setprio 2")
    p.raw("L_k1_lowprio:")
    p(f"v_fmac_f32 v39, {hx(f32(L2E_LO))}, v36")
    p("v_exp_f32 v38, v38")
    p(f"v_mul_f32 v39, {hx(f32(0.6931471805599453))}, v39")
    p("v_fma_f32 v38, v38, v39, v38")
    p("v_cvt_pk_bf16_f32 v38, v38, v38")
    p("v_lshlrev_b32 v36, 16, v38")
    p("s_waitcnt vmcnt(2)")
    ts(p, 8, 0)
    for i in range(6): p(f"v_lshlrev_b32 v{VP+i}, 16, v{VP+i}")
    p(f"v_mul_f32 v{VP}, v36, v{VP}")
    p(f"v_mul_f32 v{VP+1}, v36, v{VP+1}")
    p(f"v_mul_f32 v{VP+2}, v36, v{VP+2}")
    p(f"v_mul_f32 v{VP+3}, v36, v{VP+3}")
    p(f"v_mul_f32 v{VP}, v37, v{VP}")
    p(f"v_mul_f32 v{VP+1}, 0.15915494, v{VP+1}")
    Z1, Z8, Z256, Z2, Z4, Z512 = 132, 134, 136, 138, 140, 142
    p(f"v_mul_f32 v52, {hx(f32(8.0))}, v{VP}")
    p(f"v_mul_f32 v53, {hx(f32(8.0))}, v{VP+1}")
    p(f"v_mul_f32 v54, {hx(f32(256.0))}, v{VP}")
    p(f"v_mul_f32 v55, {hx(f32(256.0))}, v{VP+1}")
    p(f"v_fract_f32 v57, v{VP+1}")
    p("v_fract_f32 v53, v53")
    p("v_fract_f32 v55, v55")
    p("v_exp_f32 v52, v52")
    p(f"v_cos_f32 v{Z8}, v53")
    p(f"v_sin_f32 v{Z8+1}, v53")
    p(f"v_exp_f32 v56, v{VP}")
    p(f"v_cos_f32 v{Z1}, v57")
    p(f"v_sin_f32 v{Z1+1}, v57")
    p("v_exp_f32 v54, v54")
    p(f"v_cos_f32 v{Z256}, v55")
    p(f"v_sin_f32 v{Z256+1}, v55")
    H = 60
    L = [80 + 2 * i for i in range(8)]
    G = 96
    TMP = 124
    p(f"v_pk_mul_f32 v[{Z8}:{Z8+1}], v[{Z8}:{Z8+1}], v[52:53] op_sel:[0,0] op_sel_hi:[1,0]")
    p(f"v_pk_mul_f32 v[{Z1}:{Z1+1}], v[{Z1}:{Z1+1}], v[56:57] op_sel:[0,0] op_sel_hi:[1,0]")
    p(f"v_pk_mul_f32 v[{Z256}:{Z256+1}], v[{Z256}:{Z256+1}], v[54:55] op_sel:[0,0] op_sel_hi:[1,0]")
    tc = [0]
    def batch(ops):
        muls = [o for o in ops if len(o) == 5]
        for (_, d, a_, b_, cj) in muls:
            p(f"v_pk_mul_f32 {vr(d,2)}, {vr(a_,2)}, {vr(b_,2)} op_sel:[0,0] op_sel_hi:[1,0]")
        for (_, d, a_, b_, cj) in muls:
            neg = "neg_hi" if cj else "neg_lo"
            p(f"v_pk_fma_f32 {vr(d,2)}, {vr(a_,2)}, {vr(b_,2)}, {vr(d,2)} op_sel:[1,1,0] op_sel_hi:[0,1,1] {neg}:[1,0,0]")
        puts = [(o[0], o[1]) for o in ops if o[0] is not None]
        ts_ = []
        for (row, z) in puts:
            t = TMP + tc[0] % 8; tc[0] += 1
            p(f"v_cvt_pk_bf16_f32 v{t}, v{z}, v{z+1}"); ts_.append((row, t))
        for (row, t) in ts_:
            p(f"ds_write_addtid_b32 v{t} offset:{row*TPITCH}")
    L2_, L3_, L4_ = L[2], L[3], 120
    MID1 = int(sys.argv[sys.argv.index("--mid1") + 1]) if "--mid1" in sys.argv else 3
    VXG, VS = 28, 36
    def handoff_loads():
        p(f"global_load_dwordx4 v[{VXG}:{VXG+3}], v{VHX}, {sp(P_WS)} sc1")
        p(f"global_load_dwordx4 v[{VXG+4}:{VXG+7}], v{VHX2}, {sp(P_WS)} sc1")
        p(f"global_load_dwordx4 v[{VS}:{VS+3}], v{VHS}, {sp(P_WS)} sc1")
        p(f"global_load_dwordx4 v[{VS+4}:{VS+7}], v{VHS}, {sp(P_WS)} offset:1024 sc1")
    p("v_mov_b32 v122, 0x00003f80")
    p("ds_write_addtid_b32 v122 offset:0")
    batch([(None, H, VP + 4, VP + 2, False), (2, L2_, Z8, Z8, False), (None, Z2, Z1, Z1, False), (None, Z512, Z256, Z256, False), (1, Z8)])
    p(f"v_xor_b32 v{H+1}, 0x80000000, v{H+1}")
    batch([(3, L3_, L2_, Z8, False), (4, L4_, L2_, L2_, False), (None, Z4, Z2, Z2, False), (32, H + 2, H, Z1, True), (33, H + 4, H, Z2, True), (39, H + 16, H, Z8, True), (52, H)])
    batch([(5, L[5], Z8, L4_, False), (6, L[6], L2_, L4_, False), (7, L[7], L3_, L4_, False), (34, H + 6, H + 2, Z2, True), (35, H + 8, H, Z4, True), (36, H + 10, H + 2, Z4, True), (37, H + 12, H + 4, Z4, True)])
    src = [L4_, L[5], L[6], L[7]]
    hi_b = [[(38, H + 14, H + 6, Z4, True), (40, G, H + 4, Z256, True), (41, G + 2, H + 8, Z256, True), (43, G + 6, H + 16, Z256, True)],
            [(42, G + 4, H + 12, Z256, True), (44, G + 8, G + 2, Z256, True), (45, G + 10, G + 6, Z256, True)],
            [(46, G + 12, G + 2, Z512, True), (47, G + 14, G + 6, Z512, True)],
            [(48, G + 16, G + 10, Z512, True), (49, G + 18, G + 14, Z512, True)],
            [(50, G + 20, G + 16, Z512, True), (51, G + 22, G + 18, Z512, True)], []]
    for k in range(2, 8):
        dst = L[0:4] if k % 2 == 0 else L[4:8]
        batch([(4 * k + i, dst[i], src[i], L4_, False) for i in range(4)] + hi_b[k - 2])
        src = dst
        if k == MID1:
            p(f"s_cmp_eq_u32 s{S_CH}, 0")
            p("s_cbranch_scc1 L_k1_nob1")
            p("s_barrier")
            handoff_loads()
            p.raw("L_k1_nob1:")
    for i in range(4):
        p(f"v_and_b32 v{GA+2*i}, 0xffff, v{VG+i}")
        p(f"v_lshrrev_b32 v{GA+2*i+1}, 16, v{VG+i}")
    p(f"v_add_u32 v{GA+8}, s68, v{VG+4}")
    for i in range(8): p(f"v_add_u32 v{GA+i}, s68, v{GA+i}")
    ts(p, 2, 0)
    p("s_waitcnt lgkmcnt(0)")
    p("s_barrier")
    F = 96
    KA = 92
    for s_ in range(16):
        p(f"ds_read_b128 v[{F+8*s_}:{F+8*s_+3}], v{VTA} offset:{16*s_}")
        p(f"ds_read_b128 v[{F+8*s_+4}:{F+8*s_+7}], v{VTB} offset:{16*s_}")
        if s_ == 6:
            p(f"s_cmp_eq_u32 s{S_CH}, 0")
            p("s_cbranch_scc0 L_k1_noh0")
            handoff_loads()
            p.raw("L_k1_noh0:")
            p("s_mov_b32 m0, s69")
            p(f"buffer_load_dwordx4 v{VWDG}, s[72:75], s70 offen lds")
    for s_ in range(16):
        p(f"s_waitcnt lgkmcnt({min(15, 2*(15-s_))})")
        c = "0" if s_ == 0 else vr(KA, 4)
        p(f"v_mfma_f32_16x16x32_bf16 {vr(KA,4)}, {vr(F+8*s_,4)}, {vr(F+8*s_+4,4)}, {c}")
    p(f"ds_write2st64_b32 v{VKW}, v{KA}, v{KA+1} offset0:0 offset1:1")
    p(f"ds_write2st64_b32 v{VKW}, v{KA+2}, v{KA+3} offset0:2 offset1:3")
    def tagcheck():
        p(f"v_xor_b32 v24, s{S_TAG}, v{VS+1}")
        for r in (VS + 3, VS + 5, VS + 7, VXG + 1, VXG + 3, VXG + 5, VXG + 7):
            p(f"v_xor_b32 v25, s{S_TAG}, v{r}")
            p("v_or_b32 v24, v24, v25")
        p("v_cmp_ne_u32 vcc, 0, v24")
    if "--rc" in sys.argv:
        p("s_waitcnt vmcnt(1)")
        tagcheck()
        p("s_cbranch_vccz L_k1_rc")
        handoff_loads()
        p.raw("L_k1_rc:")
    def uprep(tagl):
        p.raw(f"L_k1_poll{tagl}:")
        p("s_waitcnt vmcnt(0)")
        p(f"v_xor_b32 v24, s{S_TAG}, v{VS+1}")
        for r in (VS + 3, VS + 5, VS + 7, VXG + 1, VXG + 3, VXG + 5, VXG + 7):
            p(f"v_xor_b32 v25, s{S_TAG}, v{r}")
            p("v_or_b32 v24, v24, v25")
        p("v_cmp_ne_u32 vcc, 0, v24")
        p(f"s_cbranch_vccz L_k1_polldone{tagl}")
        handoff_loads()
        p(f"s_branch L_k1_poll{tagl}")
        p.raw(f"L_k1_polldone{tagl}:")
        ts(p, 4, 0)
        for j in range(4):
            p(f"v_and_b32 v{8+j}, 0xffff0000, v{VS+2*j}")
            p(f"v_lshlrev_b32 v{12+j}, 16, v{VS+2*j}")
            p(f"v_lshlrev_b32 v{16+j}, 16, v{VXG+2*j}")
            p(f"v_and_b32 v{20+j}, 0xffff0000, v{VXG+2*j}")
        for j in range(4): p(f"v_rcp_f32 v{8+j}, v{8+j}")
        for j in range(4):
            p(f"v_sub_f32 v{16+j}, v{16+j}, v{12+j}")
            p(f"v_sub_f32 v{20+j}, v{20+j}, v{12+j}")
        for j in range(4): p(f"v_cvt_pk_bf16_f32 v{16+j}, v{16+j}, v{20+j}")
        for j in range(4):
            p(f"v_and_b32 v{20+j}, 0xffff0000, v{16+j}")
            p(f"v_lshlrev_b32 v{16+j}, 16, v{16+j}")
        for j in range(4):
            p(f"v_mul_f32 v{44+j}, v{16+j}, v{8+j}")
            p(f"v_mul_f32 v{48+j}, v{20+j}, v{8+j}")
        p("v_cvt_pk_bf16_f32 v44, v44, v45")
        p("v_cvt_pk_bf16_f32 v45, v46, v47")
        p("v_cvt_pk_bf16_f32 v48, v48, v49")
        p("v_cvt_pk_bf16_f32 v49, v50, v51")
        assert U_CH % 256 == 0 and (L_X - L_U - 512) % 256 == 0
        p(f"ds_write2st64_b32 v{VUW}, v44, v45 offset0:0 offset1:1")
        p(f"ds_write2st64_b32 v{VUW}, v48, v49 offset0:{U_CH//256} offset1:{U_CH//256+1}")
        p("s_mov_b32 s66, 0x05040100")
        p("s_mov_b32 s67, 0x07060302")
        p(f"v_perm_b32 v52, v{VXG+2}, v{VXG}, s66")
        p(f"v_perm_b32 v53, v{VXG+6}, v{VXG+4}, s66")
        p(f"v_perm_b32 v54, v{VXG+2}, v{VXG}, s67")
        p(f"v_perm_b32 v55, v{VXG+6}, v{VXG+4}, s67")
        xo = (L_X - L_U - 512) // 256
        p(f"ds_write2st64_b32 v{VUW}, v52, v53 offset0:{xo} offset1:{xo+1}")
        p(f"ds_write2st64_b32 v{VUW}, v54, v55 offset0:{xo+16} offset1:{xo+17}")
    p("s_waitcnt lgkmcnt(0)")
    p("s_barrier")
    ts(p, 3, 0)
    GV = 70
    for i in range(9): p(f"ds_read_b32 v{GV+i}, v{GA+i}")
    p("s_waitcnt lgkmcnt(0)")
    for i in range(4):
        p(f"v_cvt_pk_bf16_f32 v{80+i}, v{GV+2*i}, v{GV+2*i+1}")
        p(f"v_cvt_pk_bf16_f32 v{84+i}, v{GV+2*i+1}, v{GV+2*i+2}")
    p(f"ds_write_b128 v{VKE}, v[80:83]")
    p(f"ds_write_b128 v{VKE}, v[84:87] offset:{O_OFF}")
    ts(p, 9, 0)
    p(f"s_cmp_eq_u32 s{S_CH}, 0")
    p("s_cbranch_scc0 L_k1_nob4")
    p("s_barrier")
    p.raw("L_k1_nob4:")
    uprep("b")
    p("s_waitcnt lgkmcnt(0)")
    p("s_barrier")
    ts(p, 5, 0)
    FA = [64, 128]; FB = [96, 160]
    ACC = 192
    def ld(rr, k):
        a = FA[rr] + 4 * k
        o = (1 - (k & 1)) * 128 + (1 - rr) * 16
        b = FB[rr] + 4 * k
        return [f"ds_read2_b32 v[{a}:{a+1}], v{VA + (k >> 1)} offset0:{o} offset1:{o+1}",
                f"ds_read2_b32 v[{a+2}:{a+3}], v{VA + (k >> 1)} offset0:{o+2} offset1:{o+3}",
                f"ds_read_b128 v[{b}:{b+3}], v{VB} offset:{512*k + (1-rr)*64}"]
    seq = [(rr, k) for rr in range(2) for k in range(8)]
    AHEAD = 5
    for i in range(AHEAD):
        for x in ld(*seq[i]): p(x)
    pend = []
    for j in range(AHEAD, len(seq)): pend += ld(*seq[j])
    pend += [f"ds_read_b64_tr_b16 v[52:53], v{VWDL}", f"ds_read_b64_tr_b16 v[54:55], v{VWDL} offset:{16*224}",
             f"ds_read_b64 v[44:45], v{VUR}", f"ds_read_b64 v[46:47], v{VUR} offset:512",
             f"ds_read_b64 v[48:49], v{VXR}", f"ds_read_b64 v[50:51], v{VXR} offset:512"]
    issued = 3 * AHEAD
    first = set()
    MIDB = int(sys.argv[sys.argv.index("--midb") + 1]) if "--midb" in sys.argv else 4
    for i, (rr, k) in enumerate(seq):
        needn = 3 * (i + 1)
        while issued < needn + 3 and pend:
            p(pend.pop(0)); issued += 1
        p(f"s_waitcnt lgkmcnt({min(15, issued - needn)})")
        pairs = [(k, q) for q in range(k + 1) if k + q <= 7] + [(m, k) for m in range(k) if m + k <= 7]
        for (m, q) in pairs:
            n = m + q
            d = ACC + 4 * n
            c = vr(d, 4) if n in first else "0"
            first.add(n)
            p(f"v_mfma_f32_16x16x32_bf16 {vr(d,4)}, {vr(FA[rr]+4*m,4)}, {vr(FB[rr]+4*q,4)}, {c}")
            if pend and issued - needn < 14:
                p(pend.pop(0)); issued += 1
        if i == MIDB:
            p(f"s_cmp_eq_u32 s{S_CH}, 0")
            p("s_cbranch_scc1 L_k1_nob6")
            p("s_barrier")
            p.raw("L_k1_nob6:")
        if i == 1 and "--nowpf" not in sys.argv:
            p("s_mov_b64 exec, 0x3fff")
            p(f"global_load_dword v58, v{VPF}, {sp(P_WG)}")
            p(f"global_load_dword v59, v{VPF}, {sp(P_WU)}")
            p("s_mov_b64 exec, -1")
    assert not pend
    ts(p, 6, 0)
    for n in range(8):
        p(f"ds_write_b128 v{VPXW}, v[{ACC+4*n}:{ACC+4*n+3}] offset:{n*1024}")
    p("s_waitcnt lgkmcnt(8)")
    p(f"global_store_dwordx4 v{VWDS}, v[52:55], {sp(P_WS)} sc1")
    for q in range(4):
        p(f"v_lshlrev_b32 v{112+2*q}, 16, v{44+q}")
        p(f"v_and_b32 v{113+2*q}, 0xffff0000, v{44+q}")
        p(f"v_lshlrev_b32 v{120+2*q}, 16, v{48+q}")
        p(f"v_and_b32 v{121+2*q}, 0xffff0000, v{48+q}")
    for q in range(8): p(f"v_mul_f32 v{112+q}, s{S_DSK}, v{112+q}")
    for q in range(4): p(f"v_cvt_pk_bf16_f32 v{44+q}, v{112+2*q}, v{113+2*q}")
    for q in range(4):
        p(f"v_lshlrev_b32 v{112+2*q}, 16, v{44+q}")
        p(f"v_and_b32 v{113+2*q}, 0xffff0000, v{44+q}")
    p("s_waitcnt lgkmcnt(0)")
    p("s_barrier")
    for t in range(2):
        for src_ in range(4):
            r = 64 + (t * 4 + src_) * 4
            p(f"ds_read_b128 v[{r}:{r+3}], v{VPXR} offset:{src_*8192 + t*1024}")
    p(f"s_or_b32 s63, s2, s{S_W}")
    p("s_cmp_lg_u32 s63, 0")
    p("s_cbranch_scc1 L_k1_nobump")
    p("v_mov_b32 v100, 0")
    p(f"v_mov_b32 v101, s{S_TAG}")
    p(f"global_store_dword v100, v101, {sp(P_WS)} offset:{WS_EPOCH} sc1")
    p.raw("L_k1_nobump:")
    p("s_waitcnt lgkmcnt(0)")
    for st in ((0, 4), (8, 12), (0, 8)):
        for t in range(2):
            for q in range(2):
                x = 64 + 16 * t + st[0] + 2 * q; y = 64 + 16 * t + st[1] + 2 * q
                p(f"v_pk_add_f32 v[{x}:{x+1}], v[{x}:{x+1}], v[{y}:{y+1}]")
    ys = [64, 66, 80, 82]
    for q in range(4): p(f"v_cvt_pk_bf16_f32 v{100+q}, v{ys[q]}, v{ys[q]+1}")
    for q in range(4):
        p(f"v_lshlrev_b32 v{104+2*q}, 16, v{100+q}")
        p(f"v_and_b32 v{105+2*q}, 0xffff0000, v{100+q}")
    for q in range(4): p(f"v_pk_add_f32 v[{104+2*q}:{105+2*q}], v[{104+2*q}:{105+2*q}], v[{112+2*q}:{113+2*q}]")
    for q in range(4): p(f"v_cvt_pk_bf16_f32 v{100+q}, v{104+2*q}, v{105+2*q}")
    for q in range(4):
        p(f"v_lshlrev_b32 v{104+2*q}, 16, v{100+q}")
        p(f"v_and_b32 v{105+2*q}, 0xffff0000, v{100+q}")
    for q in range(4): p(f"v_pk_add_f32 v[{104+2*q}:{105+2*q}], v[{104+2*q}:{105+2*q}], v[{120+2*q}:{121+2*q}]")
    for q in range(4): p(f"v_cvt_pk_bf16_f32 v{100+q}, v{104+2*q}, v{105+2*q}")
    p(f"global_store_dwordx2 v{VHT}, v[100:101], {sp(P_WS)} sc1")
    p(f"global_store_dwordx2 v{VHT}, v[102:103], {sp(P_WS)} offset:512 sc1")
    ts(p, 7, 0)
    p(f"s_cmp_eq_u32 s{S_CH}, 0")
    p("s_cbranch_scc0 L_k1_fin")
    p("s_barrier")
    p.raw("L_k1_fin:")
    ts_flush(p, 0, P_WS, S_W)
    p("s_endpgm")

    p.raw("L_k1_aux:")
    S_A = 51
    if "--testchk" not in sys.argv: p("s_waitcnt vmcnt(2)")
    p(f"s_and_b32 s{S_T0}, s2, 7")
    p(f"s_lshl_b32 s{S_A}, s{S_T0}, 2")
    p(f"s_add_u32 s{S_A}, s{S_A}, s{S_T1}")
    p(f"s_sub_u32 s{S_A}, s{S_A}, 28")
    assert all(((t * 1171) >> 16) == t // 56 for t in range(512))
    p("v_mul_u32_u24 v6, 1171, v0")
    p("v_lshrrev_b32 v6, 16, v6")
    p("v_mul_u32_u24 v7, 56, v6")
    p("v_sub_u32 v7, v0, v7")
    p("v_min_u32 v6, 7, v6")
    p("v_cmp_lt_u32 vcc, 27, v7")
    p("v_subrev_u32 v8, 28, v7")
    p("v_cndmask_b32 v8, v7, v8, vcc")
    p(f"v_mov_b32 v10, s{P_WG}")
    p(f"v_mov_b32 v11, s{P_WG+1}")
    p(f"v_mov_b32 v12, s{P_WU}")
    p(f"v_mov_b32 v13, s{P_WU+1}")
    p("v_cndmask_b32 v10, v10, v12, vcc")
    p("v_cndmask_b32 v11, v11, v13, vcc")
    p(f"s_and_b32 s{S_T0}, s{S_A}, 3")
    p(f"s_mul_i32 s{S_T1}, s{S_T0}, {112*3584}")
    p(f"s_lshr_b32 s{S_T2}, s{S_A}, 2")
    p(f"s_mul_i32 s66, s{S_T2}, 448")
    p(f"s_add_u32 s{S_T1}, s{S_T1}, s66")
    p(f"v_mul_u32_u24 v9, {14*3584}, v6")
    p("v_lshl_add_u32 v9, v8, 4, v9")
    p(f"v_add_u32 v9, s{S_T1}, v9")
    p("v_add_co_u32 v10, vcc, v10, v9")
    p("v_addc_co_u32 v11, vcc, 0, v11, vcc")
    for i in range(14):
        p(f"global_load_dwordx4 v[{104+4*i}:{107+4*i}], v[10:11], off")
        if i < 13:
            p("v_add_co_u32 v10, vcc, 3584, v10")
            p("v_addc_co_u32 v11, vcc, 0, v11, vcc")
    p("s_getpc_b64 s[60:61]")
    p.raw("L_k1_pc1:")
    p("s_add_u32 s60, s60, k1_code_end-L_k1_pc1")
    p("s_addc_u32 s61, s61, 0")
    p("v_lshlrev_b32 v1, 7, v0")
    p("v_min_u32 v1, all_code_end-k1_code_end-4, v1")
    p("global_load_dword v100, v1, s[60:61]")
    for i in range(14):
        p(f"s_waitcnt vmcnt({13-i+1})")
        for k in range(4):
            d = 16 if i == 0 else 24
            p(f"v_lshlrev_b32 v{d+2*k}, 16, v{104+4*i+k}")
            p(f"v_and_b32 v{d+1+2*k}, 0xffff0000, v{104+4*i+k}")
            if i: p(f"v_pk_add_f32 v[{16+2*k}:{17+2*k}], v[{16+2*k}:{17+2*k}], v[{24+2*k}:{25+2*k}]")
    L_CS = 57344
    p("v_lshlrev_b32 v7, 5, v0")
    p(f"v_add_u32 v7, {L_CS}, v7")
    p("ds_write_b128 v7, v[16:19]")
    p("ds_write_b128 v7, v[20:23] offset:16")
    p("s_waitcnt vmcnt(0) lgkmcnt(0)")
    p("s_barrier")
    p("v_lshlrev_b32 v103, 2, v0")
    p(f"v_add_u32 v7, {L_CS}, v103")
    for i in range(8): p(f"ds_read_b32 v{48+i}, v7 offset:{1792*i}")
    p("v_cmp_lt_u32 vcc, 223, v0")
    p(f"v_mov_b32 v14, {7168 - 896}")
    p("v_cndmask_b32 v14, 0, v14, vcc")
    p(f"s_mul_i32 s68, s{S_T0}, 14336")
    p(f"s_mul_i32 s69, s{S_T2}, 896")
    p("s_add_u32 s68, s68, s69")
    p(f"s_add_u32 s68, s68, {WS_PCS}")
    p("v_add3_u32 v103, v103, v14, s68")
    p("s_waitcnt lgkmcnt(0)")
    for i in range(1, 4): p(f"v_pk_add_f32 v[48:49], v[48:49], v[{48+2*i}:{49+2*i}]")
    p("v_add_f32 v8, v48, v49")
    p(f"s_cmp_ge_u32 s{S_W}, 7")
    p("s_cbranch_scc1 L_k1_nocs")
    p(f"global_store_dword v103, v8, {sp(P_WS)}")
    p.raw("L_k1_nocs:")
    p.raw("L_k1_auxdone:")
    ts(p, 7, 0)
    ts_flush(p, 0, P_WS, S_W)
    p.raw(f"L_{name}_exit:")
    p("s_endpgm")
    tab = gather_table()
    p.raw(".p2align 7\n.type k1_gtab,@object\nk1_gtab:")
    for i in range(0, len(tab), 8):
        p.raw(".short " + ", ".join(str(v) for v in tab[i:i+8]))
    assert 2 * len(tab) <= WTAB_OFF
    p.raw(f".skip {WTAB_OFF - 2*len(tab)}")
    for w in range(8): p.raw(".long " + ", ".join(str(v) for v in wave_table(w)))
    p.raw(f".size k1_gtab, {WTAB_OFF + 1024}")
    p.raw("k1_code_end:")

def main():
    hdr = open(f"cdna_kernels/{NAME}.s.ref").read().split("; Override launch")[0]
    launches = [("k1_kernel", 256, 512, L_K1_END)]
    try:
        import gen23
        launches += gen23.launches()
    except ImportError:
        gen23 = None
    extra = int(sys.argv[sys.argv.index("--extra") + 1]) if "--extra" in sys.argv else 0
    launches += [("e_kernel", 256, 64, 0)] * extra
    out = hdr
    for k, g, b, l in launches:
        out += f"; @launch kernel={k} grid=({g},1,1) block=({b},1,1) lds={l}\n"
    out += '.amdgcn_target "amdgcn-amd-amdhsa--gfx950"\n.text\n'
    p = Prog(); gen_k1(p); out += p.render()
    kds = kd("k1_kernel", 256, 102)
    if gen23:
        t, k = gen23.gen(); out += t; kds += k
    out += "all_code_end:\n"
    if extra:
        out += ".globl e_kernel\n.p2align 8\n.type e_kernel,@function\ne_kernel:\n    s_endpgm\n"
        kds += kd("e_kernel", 8, 8)
    out += '.section .rodata,"a"\n' + kds
    dst = sys.argv[1] if len(sys.argv) > 1 and not sys.argv[1].startswith("--") else f"cdna_kernels/{NAME}.s"
    open(dst, "w").write(out)
    print("wrote", dst, len(out), "bytes; K1 LDS", L_K1_END)

if __name__ == "__main__":
    main()
```

```python
import sys
from asmgen import *
import gen as G
from gen import *

def arg(name, default):
    return int(sys.argv[sys.argv.index(name) + 1]) if name in sys.argv else default

L_W = 0
L_H = 14 * 8192
L2_END = L_H + 3 * 16384
L_CS = 13 * 8192
assert L2_END == 163840
NKL, NKC = 8, 6
FLG_STRIDE = 128

def gen_k2(p):
    name = "k2_kernel"
    prologue(p, name, 256)
    S_W, S_FS, S_RB, S_T0, S_T1, S_T2, S_LV, S_TAG, S_A, S_B = 48, 49, 50, 51, 52, 53, 54, 55, 72, 73
    S_X, S_J = 77, 78
    p("v_lshrrev_b32 v1, 6, v0")
    p("v_and_b32 v2, 63, v0")
    p(f"v_readfirstlane_b32 s{S_W}, v1")
    p(f"s_and_b32 s{S_X}, s2, 7")
    p(f"s_lshr_b32 s{S_J}, s2, 3")
    assert all(((j * 37) >> 8) == j // 7 for j in range(32))
    p(f"s_mul_i32 s{S_T0}, s{S_J}, 37")
    p(f"s_lshr_b32 s{S_T0}, s{S_T0}, 8")
    p(f"s_and_b32 s{S_RB}, s{S_X}, 4")
    p(f"s_add_u32 s{S_RB}, s{S_RB}, s{S_T0}")
    p(f"s_and_b32 s{S_T1}, s{S_X}, 3")
    p(f"s_sub_u32 s{S_T1}, s{S_T1}, s{S_T0}")
    p(f"s_mul_i32 s{S_T1}, s{S_T1}, 7")
    p(f"s_add_u32 s{S_FS}, s{S_T1}, s{S_J}")
    p("s_mov_b32 s58, %d\ns_mov_b32 s59, 0x00020000\ns_mov_b32 s62, %d\ns_mov_b32 s63, 0x00020000\ns_mov_b32 s66, %d\ns_mov_b32 s67, 0x00020000" % (WS_SIZE, 448 * 3584, 448 * 3584))
    p("s_waitcnt lgkmcnt(0)")
    p(f"s_load_dword s{S_TAG}, {sp(P_WS)}, {WS_EPOCH}")
    for base, ptr in ((56, P_WS), (60, P_WG), (64, P_WU)):
        p(f"s_mov_b32 s{base}, s{ptr}\ns_mov_b32 s{base+1}, s{ptr+1}")
    ts(p, 0, 1)
    p(f"s_cmp_ge_u32 s{S_J}, 28")
    p("s_cbranch_scc1 L_k2_aux")
    p(f"s_cmp_ge_u32 s{S_W}, 4")
    p("s_cbranch_scc1 L_k2_load")

    def g2_setup(k0mul, k0add, wsub):
        p(f"s_lshr_b32 s{S_T0}, s{S_J}, 2")
        p(f"s_mul_i32 s{S_A}, s{S_T0}, {4*57344}")
        p(f"s_add_u32 s{S_A}, s{S_A}, {WS_WDF}")
        p(f"s_and_b32 s{S_T0}, s{S_J}, 3")
        p(f"s_lshl_b32 s{S_T1}, s{S_X}, 3")
        p(f"s_add_u32 s{S_T1}, s{S_T1}, s{S_T0}")
        p(f"s_mul_i32 s{S_B}, s{S_T1}, {2*57344}")
        p(f"s_add_u32 s{S_B}, s{S_B}, {WS_HMF}")
        p(f"s_sub_u32 s79, s{S_W}, {wsub}")
        p(f"s_mul_i32 s79, s79, {k0mul}")
        p(f"s_add_u32 s79, s79, {k0add}")
        p(f"s_lshl_b32 s{S_T1}, s79, 10")
        p(f"v_lshl_add_u32 v3, v2, 4, s{S_T1}")
        p(f"s_lshr_b32 s{S_T0}, s{S_T0}, 1")
        p(f"s_lshl_b32 s{S_T1}, s{S_X}, 2")
        p(f"s_add_u32 s{S_T0}, s{S_T0}, s{S_T1}")
        p(f"s_mul_i32 s{S_T0}, s{S_T0}, 56")
        p(f"s_add_u32 s{S_T0}, s{S_T0}, s79")
        p(f"s_mul_i32 s76, s{S_T0}, {FLG_STRIDE}")
        p(f"s_add_u32 s76, s76, {WS_FLG}")
    def wd_load(WD, i):
        ks, j = divmod(i, 4)
        p(f"s_add_u32 s{S_T0}, s{S_A}, {j*57344 + ks*1024}")
        p(f"buffer_load_dwordx4 v[{WD(i)}:{WD(i)+3}], v3, s[56:59], s{S_T0} offen")
    def hm_load(HM, h, i):
        ks, t = divmod(i, 2)
        p(f"s_add_u32 s{S_T0}, s{S_B}, {(8*h+t)*57344 + ks*1024}")
        p(f"buffer_load_dwordx4 v[{HM+4*i}:{HM+4*i+3}], v3, s[56:59], s{S_T0} offen sc1")
    def poll(h, nk, lab, va, vd):
        p(f"v_min_u32 v{va}, {nk-1}, v2")
        p(f"v_mul_u32_u24 v{va}, {FLG_STRIDE}, v{va}")
        p(f"s_add_u32 s{S_T0}, s76, {h*2*56*FLG_STRIDE}")
        p.raw(f"{lab}:")
        p(f"buffer_load_dword v{vd}, v{va}, s[56:59], s{S_T0} offen sc1")
        p("s_waitcnt vmcnt(0)")
        p(f"v_cmp_ne_u32 vcc, s{S_TAG}, v{vd}")
        p(f"s_cbranch_vccnz {lab}")
    def gemm2(tagl, nk, WD, HM, ACC, T, pre_issued_a):
        p(f"v_and_b32 v{T}, 15, v2")
        p(f"v_lshrrev_b32 v{T+1}, 4, v2")
        p(f"s_lshr_b32 s{S_T0}, s{S_W}, 1")
        p(f"s_lshl_b32 s{S_T0}, s{S_T0}, 4")
        p(f"s_lshr_b32 s{S_T1}, s{S_J}, 2")
        p(f"s_lshl_b32 s{S_T1}, s{S_T1}, 6")
        p(f"s_add_u32 s68, s{S_T0}, s{S_T1}")
        p(f"s_and_b32 s{S_T0}, s{S_W}, 1")
        p(f"s_lshl_b32 s{S_T0}, s{S_T0}, 4")
        p(f"s_and_b32 s{S_T1}, s{S_J}, 3")
        p(f"s_lshl_b32 s{S_T1}, s{S_T1}, 5")
        p(f"s_add_u32 s69, s{S_T0}, s{S_T1}")
        p(f"s_lshl_b32 s{S_T0}, s{S_X}, 8")
        p(f"s_add_u32 s69, s69, s{S_T0}")
        p(f"v_add_u32 v{T}, s69, v{T}")
        p(f"v_lshl_add_u32 v{T+1}, v{T+1}, 2, s68")
        p(f"v_lshlrev_b32 v{T+2}, 12, v{T+1}")
        p(f"v_lshl_add_u32 v{T+2}, v{T}, 1, v{T+2}")
        p(f"v_mul_u32_u24 v{T+3}, 896, v{T}")
        p(f"v_lshl_add_u32 v{T+3}, v{T+1}, 1, v{T+3}")
        p(f"v_lshlrev_b32 v{T}, 3, v{T}")
        p(f"s_lshl_b32 s{S_T0}, s{S_W}, 13")
        p(f"v_lshl_add_u32 v{T+1}, v2, 4, s{S_T0}")
        p(f"s_lshl_b32 s{S_T0}, s{S_W}, 10")
        p(f"v_lshl_add_u32 v{T+4}, v2, 4, s{S_T0}")
        def mm(extra):
            for ks in range(nk):
                p(f"s_waitcnt vmcnt({2*(nk-1-ks) + extra})")
                for t in range(2):
                    for j in range(4):
                        d = ACC + (j * 2 + t) * 4
                        p(f"v_mfma_f32_16x16x32_bf16 {vr(d,4)}, {vr(WD(ks*4+j),4)}, {vr(HM+(ks*2+t)*4,4)}, {'0' if ks == 0 else vr(d,4)}")
        def pwrite():
            for i in range(8):
                p(f"ds_write_b128 v{T+1}, v[{ACC+4*i}:{ACC+4*i+3}] offset:{1024*i}")
        def small_loads(h, R):
            for r in range(4):
                p(f"s_mov_b32 s{S_T0}, {WS_HT + 4096*r + 256*h}")
                p(f"buffer_load_ushort v{R+r}, v{T+2}, s[56:59], s{S_T0} offen")
            p(f"s_mov_b32 s{S_T0}, {WS_ST2 + 1024*h}")
            p(f"buffer_load_dword v{T+5}, v{T}, s[56:59], s{S_T0} offen sc1")
        def reduce(h, b, R, vmw):
            for src in range(8):
                p(f"ds_read_b128 v[{b+4*src}:{b+4*src+3}], v{T+4} offset:{src * 8192}")
            p(f"s_waitcnt vmcnt({vmw})")
            p(f"v_and_b32 v{T+5}, 0xffff0000, v{T+5}")
            p(f"v_mul_f32 v{T+5}, v{T+5}, v{T+5}")
            p(f"v_rcp_f32 v{T+5}, v{T+5}")
            for r in range(4): p(f"v_lshlrev_b32 v{R+r}, 16, v{R+r}")
            for st in (4, 2, 1):
                for i in range(st):
                    if st == 4: p(f"s_waitcnt lgkmcnt({3 - i})")
                    for q_ in range(2):
                        x = b + 4 * i + 2 * q_; y = b + 4 * (i + st) + 2 * q_
                        p(f"v_pk_add_f32 v[{x}:{x+1}], v[{x}:{x+1}], v[{y}:{y+1}]")
            for r in range(4): p(f"v_mul_f32 v{b+r}, v{T+5}, v{b+r}")
            p(f"v_cvt_pk_bf16_f32 v{b+4}, v{b}, v{b+1}")
            p(f"v_cvt_pk_bf16_f32 v{b+5}, v{b+2}, v{b+3}")
            for r in range(4):
                src = b + 4 + r // 2
                p(f"v_lshlrev_b32 v{b+r}, 16, v{src}" if r % 2 == 0 else f"v_and_b32 v{b+r}, 0xffff0000, v{src}")
            for r in range(4): p(f"v_add_f32 v{b+r}, v{b+r}, v{R+r}")
            p(f"v_cvt_pk_bf16_f32 v{b+4}, v{b}, v{b+1}")
            p(f"v_cvt_pk_bf16_f32 v{b+5}, v{b+2}, v{b+3}")
            p(f"global_store_dwordx2 v{T+3}, v[{b+4}:{b+5}], {sp(P_OUT)}")
        R = 4
        mm(pre_issued_a)
        ts(p, 5, 1)
        pwrite()
        small_loads(0, R)
        poll(1, nk, f"L_k2_pb{tagl}", T + 6, T + 7)
        ts(p, 6, 1)
        for i in range(2 * nk): hm_load(HM, 1, i)
        p("s_waitcnt lgkmcnt(0)")
        p("s_barrier")
        reduce(0, ACC, R, 2 * nk)
        small_loads(1, R)
        p(f"v_add_u32 v{T+3}, {128*896}, v{T+3}")
        p(f"v_add_u32 v{T+1}, 65536, v{T+1}")
        p(f"v_add_u32 v{T+4}, 65536, v{T+4}")
        mm(6)
        ts(p, 8, 1)
        pwrite()
        p("s_waitcnt lgkmcnt(0)")
        p("s_barrier")
        reduce(1, ACC, R, 0)
        ts(p, 7, 1)
        ts_flush(p, 1, P_WS, S_W)
        p("s_endpgm")

    FR = [8, 40]
    ACC = 72
    CS = 136
    ST = 152
    AH = 160
    AW = 164
    TT = 168
    WDC = lambda i: 176 + 4 * i if i < 20 else 136 + 4 * (i - 20)
    p("v_lshrrev_b32 v6, 2, v2")
    p("v_and_b32 v5, 3, v2")
    p("v_and_b32 v7, 7, v6")
    p(f"s_and_b32 s70, s{S_W}, 1")
    p(f"s_lshr_b32 s71, s{S_W}, 1")
    p("v_lshlrev_b32 v4, 8, v6")
    p("v_lshl_add_u32 v4, v5, 3, v4")
    p(f"v_add_u32 v4, {L_H}, v4")
    p(f"s_lshl_b32 s{S_T0}, s70, 2")
    for t in range(4):
        p(f"s_add_u32 s{S_T1}, s{S_T0}, {t}")
        p(f"v_xor_b32 v{TT}, s{S_T1}, v7")
        p(f"v_lshl_add_u32 v{AH+t}, v{TT}, 5, v4")
    p("v_bfe_u32 v7, v6, 1, 2")
    p("v_lshlrev_b32 v4, 7, v6")
    p("v_lshl_add_u32 v4, v5, 3, v4")
    p(f"s_lshl_b32 s{S_T0}, s71, 1")
    for jj in range(2):
        p(f"s_add_u32 s{S_T1}, s{S_T0}, {jj}")
        p(f"v_xor_b32 v{TT}, s{S_T1}, v7")
        p(f"v_lshl_add_u32 v{AW+jj}, v{TT}, 5, v4")
        p(f"v_add_u32 v{AW+2+jj}, {7*8192}, v{AW+jj}")
    g2_setup(NKC, 4 * NKL, 0)
    p(f"s_lshl_b32 s{S_T0}, s{S_RB}, 4")
    p(f"s_lshl_b32 s{S_T1}, s70, 2")
    p(f"s_add_u32 s{S_T0}, s{S_T0}, s{S_T1}")
    p(f"s_mul_i32 s{S_T0}, s{S_T0}, 56")
    p(f"s_lshl_b32 s{S_T1}, s{S_FS}, 1")
    p(f"s_add_u32 s{S_T1}, s{S_T1}, s71")
    p(f"s_add_u32 s{S_T0}, s{S_T0}, s{S_T1}")
    p(f"s_lshl_b32 s74, s{S_T0}, 10")
    p(f"s_add_u32 s74, s74, {WS_HMF}")
    p(f"s_lshl_b32 s{S_T0}, s{S_RB}, 2")
    p(f"s_add_u32 s{S_T0}, s{S_T0}, s70")
    p(f"s_mul_i32 s{S_T0}, s{S_T0}, 56")
    p(f"s_add_u32 s{S_T0}, s{S_T0}, s{S_T1}")
    p(f"s_mul_i32 s75, s{S_T0}, {FLG_STRIDE}")
    p(f"s_add_u32 s75, s75, {WS_FLG}")
    p("v_and_b32 v4, 15, v2")
    p(f"s_lshl_b32 s{S_T0}, s{S_RB}, 11")
    p(f"s_lshl_b32 s{S_T1}, s70, 9")
    p(f"s_add_u32 s{S_T0}, s{S_T0}, s{S_T1}")
    p(f"s_add_u32 s{S_T0}, s{S_T0}, {WS_ST2}")
    p(f"v_lshl_add_u32 v0, v4, 3, s{S_T0}")
    p("v_lshlrev_b32 v1, 4, v2")
    p("v_lshrrev_b32 v4, 4, v2")
    p(f"s_lshl_b32 s{S_T0}, s71, 7")
    p(f"s_add_u32 s{S_T0}, s{S_T0}, {L_CS}")
    p(f"v_lshl_add_u32 v4, v4, 4, s{S_T0}")
    def reads(k):
        ph, kk = divmod(k, 14)
        slot = (k // 2) % 3
        ho = slot * 16384 + (k % 2) * 8192
        b, wo = divmod(kk, 7); wo *= 8192
        fr = FR[k & 1]
        out = []
        for t in range(4):
            r = fr + 16 + 4 * t
            out.append(f"ds_read_b64_tr_b16 v[{r}:{r+1}], v{AH+t} offset:{ho}")
            out.append(f"ds_read_b64_tr_b16 v[{r+2}:{r+3}], v{AH+t} offset:{ho+4096}")
        for a in range(4):
            r = fr + 4 * a
            oo = wo + (a >> 1) * 4096
            out.append(f"ds_read_b64_tr_b16 v[{r}:{r+1}], v{AW+2*b+(a&1)} offset:{oo}")
            out.append(f"ds_read_b64_tr_b16 v[{r+2}:{r+3}], v{AW+2*b+(a&1)} offset:{oo+2048}")
        return out
    def st_loads(h):
        for t in range(4):
            p(f"buffer_load_dwordx2 v[{ST+2*t}:{ST+2*t+1}], v0, s[56:59], 0 offen offset:{128*t + 1024*h} sc1")
    def epilogue(h, vm_extra):
        p.raw(f"L_k2_st{h}:")
        p(f"s_waitcnt vmcnt({vm_extra})")
        p(f"v_xor_b32 v{TT}, s{S_TAG}, v{ST+1}")
        for t in range(1, 4):
            p(f"v_xor_b32 v{TT+1}, s{S_TAG}, v{ST+2*t+1}")
            p(f"v_or_b32 v{TT}, v{TT}, v{TT+1}")
        p(f"v_cmp_ne_u32 vcc, 0, v{TT}")
        p(f"s_cbranch_vccz L_k2_sto{h}")
        st_loads(h)
        p("s_waitcnt vmcnt(0)")
        p(f"s_branch L_k2_st{h}")
        p.raw(f"L_k2_sto{h}:")
        for t in range(4): p(f"v_lshlrev_b32 v{ST+2*t}, 16, v{ST+2*t}")
        for t in range(4):
            o = TT + 4 * (t & 1)
            for a in range(4):
                g = ACC + (a * 4 + t) * 4
                for q in range(2):
                    p(f"v_pk_fma_f32 v[{g+2*q}:{g+2*q+1}], v[{CS+4*a+2*q}:{CS+4*a+2*q+1}], v[{ST+2*t}:{ST+2*t+1}], v[{g+2*q}:{g+2*q+1}] op_sel:[0,0,0] op_sel_hi:[1,0,1] neg_lo:[0,1,0] neg_hi:[0,1,0]")
            for a in range(2):
                g = ACC + (a * 4 + t) * 4
                for r in range(4): p(f"v_max_f32 v{g+r}, 0, v{g+r}")
            for a in range(2):
                g = ACC + (a * 4 + t) * 4; u = ACC + ((2 + a) * 4 + t) * 4
                for q in range(2):
                    p(f"v_pk_mul_f32 v[{g+2*q}:{g+2*q+1}], v[{g+2*q}:{g+2*q+1}], v[{u+2*q}:{u+2*q+1}]")
            for a in range(2):
                g = ACC + (a * 4 + t) * 4
                p(f"v_cvt_pk_bf16_f32 v{o+2*a}, v{g}, v{g+1}")
                p(f"v_cvt_pk_bf16_f32 v{o+2*a+1}, v{g+2}, v{g+3}")
            p(f"s_add_u32 s{S_T1}, s74, {(8*h+t)*56*1024}")
            p(f"buffer_store_dwordx4 v[{o}:{o+3}], v1, s[56:59], s{S_T1} offen sc1")
    def flag(h):
        p(f"s_add_u32 s{S_T0}, s75, {h*2*56*FLG_STRIDE}")
        p(f"v_mov_b32 v5, s{S_T0}")
        p(f"v_mov_b32 v6, s{S_TAG}")
        p("s_mov_b64 exec, 1")
        p("buffer_store_dword v6, v5, s[56:59], 0 offen sc1")
        p("s_mov_b64 exec, -1")
    p("s_barrier")
    ts(p, 1, 1)
    tsc(p, 12)
    for x in reads(0): p(x)
    p("s_waitcnt lgkmcnt(0)")
    nwd = 0
    WDSCHED = {k: 2 for k in range(17, 27)}
    for k in range(28):
        pend = []
        if k % 2 == 1: p("s_barrier")
        if k < 27: pend = reads(k + 1)
        if k == 5: pend += [f"ds_read_b128 v[{CS+4*a}:{CS+4*a+3}], v4 offset:{64*(a&1) + 256*(a>>1)}" for a in range(4)]
        if k == 11: st_loads(0)
        if k == 16:
            p("s_waitcnt vmcnt(0)")
            flag(0)
            st_loads(1)
        for _ in range(WDSCHED.get(k, 0)):
            wd_load(WDC, nwd); nwd += 1
        fr = FR[k & 1]
        order = [(a, t) for a in range(4) for t in range(4)]
        if k % 14 == 13: order = [(a, t) for t in range(4) for a in range(4)]
        for (a, t) in order:
            d = ACC + (a * 4 + t) * 4
            p(f"v_mfma_f32_16x16x32_bf16 {vr(d,4)}, {vr(fr+4*a,4)}, {vr(fr+16+4*t,4)}, {'0' if k % 14 == 0 else vr(d,4)}")
            if pend: p(pend.pop(0))
        while pend: p(pend.pop(0))
        p("s_waitcnt lgkmcnt(0)")
        if k == 13:
            ts(p, 9, 1)
            epilogue(0, 0)
            ts(p, 10, 1)
    assert nwd == 20
    ts(p, 2, 1)
    tsc(p, 13)
    epilogue(1, 20)
    ts(p, 3, 1)
    HMC = 8
    poll(0, NKC, "L_k2_pac", 5, 6)
    flag(1)
    ts(p, 4, 1)
    for i in range(20, 4 * NKC): wd_load(WDC, i)
    for i in range(2 * NKC): hm_load(HMC, 0, i)
    gemm2("c", NKC, WDC, HMC, 72, 56, 0)

    p.raw("L_k2_load:")
    p(f"s_sub_u32 s{S_LV}, s{S_W}, 4")
    WDL = lambda i: 8 + 4 * i
    HML = 136; TL = 200; ACL = 224
    p("v_lshrrev_b32 v4, 4, v2")
    p("v_bfe_u32 v5, v2, 1, 3")
    p("v_and_b32 v6, 1, v2")
    p(f"s_lshl_b32 s{S_T0}, s{S_LV}, 16")
    p(f"s_lshl_b32 s{S_T1}, s{S_RB}, 9")
    p(f"s_add_u32 s{S_T0}, s{S_T0}, s{S_T1}")
    p(f"s_add_u32 s{S_T0}, s{S_T0}, {WS_HT}")
    for i in range(2):
        p(f"v_add_u32 v7, {4*i}, v4")
        p("v_xor_b32 v200, v7, v5")
        p("v_lshlrev_b32 v200, 5, v200")
        p("v_lshl_add_u32 v200, v6, 4, v200")
        p("v_lshl_add_u32 v200, v7, 12, v200")
        p(f"v_add_u32 v{224+i}, s{S_T0}, v200")
    p("v_lshrrev_b32 v4, 3, v2")
    p("v_bfe_u32 v5, v2, 1, 2")
    p("v_lshrrev_b32 v7, 1, v4")
    p("v_xor_b32 v5, v5, v7")
    p("v_lshlrev_b32 v5, 5, v5")
    p("v_lshl_add_u32 v5, v6, 4, v5")
    p("v_mul_u32_u24 v4, 3584, v4")
    p(f"s_mul_i32 s{S_T0}, s{S_LV}, {8*3584}")
    p(f"s_lshl_b32 s{S_T1}, s{S_FS}, 7")
    p(f"s_add_u32 s{S_T0}, s{S_T0}, s{S_T1}")
    p(f"v_add3_u32 v226, v4, v5, s{S_T0}")
    p(f"s_lshl_b32 s74, s{S_LV}, 12")
    p(f"s_lshl_b32 s75, s{S_LV}, 10")
    q = []
    def dma_w(kk, tag):
        p(f"s_mov_b32 s{S_T1}, {kk*32*3584}")
        p(f"s_add_u32 m0, s75, {L_W + kk*8192}")
        p(f"buffer_load_dwordx4 v226, s[60:63], s{S_T1} offen lds")
        p(f"s_add_u32 m0, s75, {L_W + kk*8192 + 4096}")
        p(f"buffer_load_dwordx4 v226, s[64:67], s{S_T1} offen lds")
        q.extend([tag] * 2)
    def dma_h(i):
        ph, ii = divmod(i, 7)
        for n in range(4):
            p(f"s_mov_b32 s{S_T1}, {(ii*64 + (n>>1)*8)*4096 + ph*256}")
            p(f"s_add_u32 m0, s74, {L_H + (i % 3)*16384 + 1024*n}")
            p(f"buffer_load_dwordx4 v{224+(n&1)}, s[56:59], s{S_T1} offen lds")
        q.extend([i] * 4)
    def stage(i):
        if i < 7:
            dma_w(2 * i, i); dma_w(2 * i + 1, i)
        dma_h(i)
    def wait_tag(tag):
        last = max(n for n, e in enumerate(q) if e == tag)
        p(f"s_waitcnt vmcnt({len(q) - 1 - last})")
    stage(0); stage(1)
    p("v_cmp_lt_u32 vcc, 31, v2")
    p(f"v_mov_b32 v227, {7168 - 256}")
    p("v_cndmask_b32 v227, 0, v227, vcc")
    p("v_lshl_add_u32 v227, v2, 3, v227")
    p(f"s_lshl_b32 s{S_T1}, s{S_FS}, 8")
    p(f"s_add_u32 s{S_T1}, s{S_T1}, {WS_PCS}")
    p(f"v_add_u32 v227, s{S_T1}, v227")
    for i in range(4):
        p(f"s_mov_b32 s{S_T1}, {i*14336}")
        p(f"buffer_load_dwordx2 v[{228+2*i}:{229+2*i}], v227, s[56:59], s{S_T1} offen")
    q.extend(["c"] * 4)
    ts(p, 1, 1)
    g2_setup(NKL, 0, 4)
    nwd = 0
    EXB = arg("--exb", 4)
    for i in range(14):
        wait_tag(i)
        if i == 2:
            p("v_pk_add_f32 v[228:229], v[228:229], v[230:231]")
            p("v_pk_add_f32 v[232:233], v[232:233], v[234:235]")
            p("v_pk_add_f32 v[228:229], v[228:229], v[232:233]")
            p("v_lshlrev_b32 v227, 3, v2")
            p(f"v_add_u32 v227, {L_CS}, v227")
            p("ds_write_b64 v227, v[228:229]")
            p("s_waitcnt lgkmcnt(0)")
        p("s_barrier")
        if i + 2 < 14: stage(i + 2)
        if i >= 5:
            n = EXB if i + 2 < 14 else 8
            for _ in range(n):
                if nwd < 4 * NKL:
                    wd_load(WDL, nwd); nwd += 1; q.append("x")
    while nwd < 4 * NKL:
        wd_load(WDL, nwd); nwd += 1
    p("s_waitcnt lgkmcnt(0)")
    p("s_barrier")
    ts(p, 3, 1)
    poll(0, NKL, "L_k2_pal", 4, 5)
    ts(p, 4, 1)
    for i in range(2 * NKL): hm_load(HML, 0, i)
    gemm2("l", NKL, WDL, HML, ACL, TL, 0)

    p.raw("L_k2_aux:")
    p(f"s_sub_u32 s{S_T0}, s{S_J}, 28")
    p(f"s_lshl_b32 s{S_T0}, s{S_T0}, 6")
    p(f"s_lshl_b32 s{S_T1}, s{S_X}, 8")
    p(f"s_add_u32 s{S_T2}, s{S_T0}, s{S_T1}")
    p(f"s_lshl_b32 s{S_T0}, s{S_T2}, 1")
    p(f"s_add_u32 s{S_T0}, s{S_T0}, {WS_HT}")
    p("v_and_b32 v3, 7, v0")
    p("v_lshrrev_b32 v4, 3, v0")
    p(f"v_mul_u32_u24 v5, {7*4096}, v4")
    p("v_lshl_add_u32 v5, v3, 4, v5")
    p(f"v_add_u32 v5, s{S_T0}, v5")
    for i in range(7):
        p(f"s_mov_b32 s{S_T1}, {4096*i}")
        p(f"buffer_load_dwordx4 v[{8+4*i}:{11+4*i}], v5, s[56:59], s{S_T1} offen")
    for i in range(16): p(f"v_mov_b32 v{48+i}, 0")
    for i in range(7):
        p(f"s_waitcnt vmcnt({6-i})")
        for k in range(4):
            p(f"v_lshlrev_b32 v{40+2*k}, 16, v{8+4*i+k}")
            p(f"v_and_b32 v{41+2*k}, 0xffff0000, v{8+4*i+k}")
        for k in range(4):
            p(f"v_pk_add_f32 v[{48+2*k}:{49+2*k}], v[{48+2*k}:{49+2*k}], v[{40+2*k}:{41+2*k}]")
            p(f"v_pk_fma_f32 v[{56+2*k}:{57+2*k}], v[{40+2*k}:{41+2*k}], v[{40+2*k}:{41+2*k}], v[{56+2*k}:{57+2*k}]")
    for i in range(16):
        p(f"v_add_f32_dpp v{48+i}, v{48+i}, v{48+i} row_ror:8 row_mask:0xf bank_mask:0xf")
    p("v_lshrrev_b32 v6, 4, v0")
    p("v_lshlrev_b32 v6, 9, v6")
    p("v_lshl_add_u32 v6, v3, 6, v6")
    for i in range(4): p(f"ds_write_b128 v6, v[{48+4*i}:{51+4*i}] offset:{16*i}")
    p("s_waitcnt lgkmcnt(0)")
    p("s_barrier")
    p(f"s_cmp_lg_u32 s{S_W}, 0")
    p(f"s_cbranch_scc1 L_{name}_exit")
    p("v_lshrrev_b32 v6, 3, v2")
    p("v_lshlrev_b32 v6, 6, v6")
    p("v_and_b32 v7, 7, v2")
    p("v_lshl_add_u32 v6, v7, 2, v6")
    for g in range(32):
        if g % 2 == 0 and g: p("v_add_u32 v6, 1024, v6")
        p(f"ds_read2_b32 v[{8+2*g}:{9+2*g}], v6 offset0:{(g%2)*128} offset1:{(g%2)*128+8}")
    p("s_waitcnt lgkmcnt(0)")
    for g in range(2, 32):
        a = 8 + 2 * (g & 1)
        p(f"v_pk_add_f32 v[{a}:{a+1}], v[{a}:{a+1}], v[{8+2*g}:{9+2*g}]")
    p("v_pk_add_f32 v[8:9], v[8:9], v[10:11]")
    ln_finish(p, 8, 9, 10)
    p(f"v_mov_b32 v11, s{S_TAG}")
    p(f"s_lshl_b32 s{S_T0}, s{S_T2}, 3")
    p(f"s_add_u32 s{S_T0}, s{S_T0}, {WS_ST2}")
    p(f"v_lshl_add_u32 v6, v2, 3, s{S_T0}")
    p("buffer_store_dwordx2 v[10:11], v6, s[56:59], 0 offen sc1")
    ts(p, 7, 1)
    ts_flush(p, 1, P_WS, S_W)
    p.raw(f"L_{name}_exit:")
    p("s_endpgm")

def launches(): return [("k2_kernel", 256, 512, L2_END)]
def gen():
    p = Prog(); gen_k2(p); t = p.render()
    return t, kd("k2_kernel", 256, 102)
```
